```python
import torch

def _softmax(x, axis=-1):
    return torch.softmax(x, dim=axis)
def _gelu(x):
    return torch.nn.functional.gelu(x, approximate="tanh")
def _silu(x):
    return torch.nn.functional.silu(x)
def _sigmoid(x):
    return torch.sigmoid(x)
def _layernorm(x, axis=-1, eps=1e-5):
    m = x.mean(dim=axis, keepdim=True)
    v = x.var(dim=axis, keepdim=True, unbiased=False)
    return (x - m) / torch.sqrt(v + eps)
def _scatter_add(tgt, idx, src, axis=0):
    return tgt.clone().index_add_(axis, idx, src)
def _segment_sum(src, seg, n):
    out = torch.zeros((n,) + src.shape[1:], dtype=src.dtype)
    return out.index_add_(0, seg, src)
def _pad(x, pw):
    flat = tuple(v for pair in reversed(pw) for v in pair)
    return torch.nn.functional.pad(x, flat)

kernel_name = 'standalone__mha_block_cached__near_ridge'

def setup_inputs():

    _w = (lambda a: (lambda t: t.to(torch.bfloat16) if t.is_floating_point() else t)(torch.as_tensor(a)))
    B, Sq, D = 8, 64, 640
    H, Sk, Dh = 32, 64, 192
    return {
        "x": _w((lambda *s: torch.randn(*s, dtype=torch.bfloat16) * 0.8)(B, Sq, D)),
        "k_cache": _w((lambda *s: torch.randn(*s, dtype=torch.bfloat16) * 0.8)(B, H, Sk, Dh)),
        "v_cache": _w((lambda *s: torch.randn(*s, dtype=torch.bfloat16) * 0.05)(B, H, Sk, Dh)),
        "wq": _w((lambda *s: torch.randn(*s, dtype=torch.bfloat16) * 0.8)(D, H * Dh) * (D ** -0.5)),
        "wo": _w((lambda *s: torch.randn(*s, dtype=torch.bfloat16) * 0.05)(H * Dh, D) * ((H * Dh) ** -0.5)),
    }

def reference(x, k_cache, v_cache, wq, wo):
    B, Sq, D = x.shape
    H, Dh = 32, 192
    q = (lambda x, *d: x.permute(*d))((x @ wq).reshape(B, Sq, H, Dh), 0, 2, 1, 3)
    scores = torch.einsum("bhqd,bhkd->bhqk", q, k_cache) * (Dh ** -0.5)
    p = _softmax(scores, axis=-1)
    o = torch.einsum("bhqk,bhkd->bhqd", p, v_cache)
    return (lambda x, *d: x.permute(*d))(o, 0, 2, 1, 3).reshape(B, Sq, H * Dh) @ wo
```

```python
import sys, os, math, struct

PROF = int(os.environ.get("PROF", "0"))
NOMFMA = int(os.environ.get("NOMFMA", "0"))
NT = "nt " if int(os.environ.get("NT", "1")) else ""
W2POS = int(os.environ.get("W2POS", "11"))
HOTLEAD = int(os.environ.get("HOTLEAD", "2"))

def f2u(f): return struct.unpack("<I", struct.pack("<f", f))[0]

class G:
    lab = 0
    def __init__(self, role):
        self.role = role
        self.o = []; self.vm = []; self.lg = []
        self.nstamp = 0; self.live = []; self.names = []; self.nbar = 0
    def e(self, s): self.o.append("    " + s)
    def label(self, s): self.o.append(s + ":")
    def newlabel(self, p="L"):
        G.lab += 1
        return f"{p}_{G.lab}"
    def vmem(self, s, tag, kind="ld"):
        self.e(s); self.vm.append((tag, kind))
    def wait_vm(self, tag):
        idxs = [i for i, (t, k) in enumerate(self.vm) if t == tag]
        if not idxs: return
        idx = max(idxs)
        n = sum(1 for (t, k) in self.vm[idx+1:] if k == "ld")
        self.e(f"s_waitcnt vmcnt({min(n, 63)})")
    def ds(self, s, tag):
        self.e(s); self.lg.append(tag)
    def wait_lg(self, tag):
        idx = max(i for i, t in enumerate(self.lg) if t == tag)
        n = len(self.lg) - 1 - idx
        self.e(f"s_waitcnt lgkmcnt({min(n, 15)})")
    def wait_lg_all(self):
        self.e("s_waitcnt lgkmcnt(0)")
    def barrier(self, name=""):
        self.e("s_barrier"); self.nbar += 1
        if name: self.stamp(name)
    def stamp(self, name=""):
        if PROF == self.role:
            r = 64 + 2*(self.nstamp % 8)
            self.flush_stamps(keep=7)
            self.e(f"s_memtime s[{r}:{r+1}]")
            self.live.append((self.nstamp, r))
            self.names.append(name or str(self.nstamp))
            self.nstamp += 1
    def flush_stamps(self, keep=0):
        while len(self.live) > keep:
            n, r = self.live.pop(0)
            self.e(f"v_writelane_b32 v{V_STAMP}, s{r}, {n}")

SLOT = 32768
WQ_IMG = 0; X_IMG = 24576
WO_IMG = 0; V_IMG = 20480
PREG = 0
PART = 2 << 20
FLG = 8 << 20
STAMPS = 16 << 20
WS_BYTES = 268435456
SCALE_LOG2E = (192 ** -0.5) * math.log2(math.e)

S_W = 3; S_B = 4; S_G = 5; S_Q = 6; S_H = 7
SRD_X = 8; SRD_WQ = 12; SRD_K = 16; SRD_V = 20; SRD_WO = 24; SRD_WS = 28; SRD_OUT = 32; SRD_DBG = 36
S_KA = 40
S_C = 44; S_PB = 45; S_T2 = 46; S_T3 = 47; S_CNT = 48; S_PARTW = 50; S_PARTR = 51; S_OUTO = 52; S_FLGO = 53
S_WL = 98; S_H1024 = 99; S_W2048 = 100
S_FLGR = 42; S_FLGP = 43
def srd(r): return f"s[{r}:{r+3}]"
def vr(b, n): return f"v[{b}:{b+n-1}]"
def ar(b, n): return f"a[{b}:{b+n-1}]"

V_LANE = 1; V_L16 = 10; V_L8 = 11; V_M = 12; V_G4 = 13
T = list(range(14, 24))
V_STAMP = 39
V_WQ = list(range(24, 30)); V_X = [30, 31]; V_K = list(range(32, 38)); V_WO = list(range(40, 45)); V_V = [45, 46]
V_PD = 48
V_PRE = [80, 81, 82, 83, 84, 85]
S_KC = 56; S_OWQ = 57; S_OX = 58; S_W6144 = 59; S_W5120 = 60; S_RH = 61; S_RD = 41; S_OWO = 40; S_OV = 101
V_A = [24, 25, 26]; V_B = [27, 28]; V_CA = [29, 30, 31]; V_CB = [32, 33]; V_QW = [34, 35, 36]; V_KR = [37, 38]
V_VR = [2, 3]; V_W = [4, 5]; V_PR = 6
ACC1 = 40; SACC = 40; PF = 56; ACC2 = [40, 80]; OACC = 40
A_SET = [0, 28]; A_KF = 0; A_QF = 96; A_VW = 56; A_PF = [0, 16]
GR = 48

LSLOT = [c % 3 for c in range(10)]
KSLOT = 1; QSLOT = 0
WSLOT = [3, 4, 2, 0, 1, 3, 4, 2, 0, 1, 3, 4]
PIMG = 2 * SLOT
RBUF = 0
NVAR = int(os.environ.get("NVAR", "4"))
W0POS = [int(x) for x in os.environ.get("W0POS", "1,2,3,4").split(",")]
W1POS = [int(x) for x in os.environ.get("W1POS", "5,6,7,8").split(",")]
KPOS = int(os.environ.get("KPOS", "8"))

NAME = "standalone__mha_block_cached__near_ridge_kernel"
hdr = open("standalone__mha_block_cached__near_ridge.s.ref").read().split("\n")
head = [l for l in hdr if l.startswith(";") and "@launch" not in l and "Override" not in l and "grid=ceil" not in l]
out = head + [f"; @launch grid=(256,1,1) block=(512,1,1) lds=163840",
 '.amdgcn_target "amdgcn-amd-amdhsa--gfx950"', ".text", f".globl {NAME}", ".p2align 8", f".type {NAME},@function", f"{NAME}:"]

P = G(0); e = P.e
e("s_cmp_ge_u32 s2, 256")
e("s_cbranch_scc1 L_end")
if PROF: e("s_memtime s[64:65]")
e(f"s_load_dwordx16 s[{S_KA}:{S_KA+15}], s[0:1], 0")
e(f"s_and_b32 s{S_G}, s2, 7")
e("s_lshr_b32 s62, s2, 3")
e(f"s_and_b32 s{S_Q}, s62, 3")
e(f"s_lshr_b32 s{S_B}, s2, 5")
e(f"s_lshl_b32 s{S_H}, s{S_G}, 2")
e(f"s_add_u32 s{S_H}, s{S_H}, s{S_Q}")
e(f"v_lshrrev_b32 v2, 6, v0")
e(f"v_and_b32 v{V_LANE}, 63, v0")
e(f"v_readfirstlane_b32 s{S_W}, v2")
e(f"v_and_b32 v{V_M}, 15, v{V_LANE}")
e(f"v_lshrrev_b32 v{V_G4}, 4, v{V_LANE}")
e(f"v_lshlrev_b32 v{V_L16}, 4, v{V_LANE}")
e(f"v_lshlrev_b32 v{V_L8}, 3, v{V_LANE}")
e(f"s_and_b32 s{S_WL}, s{S_W}, 3")
e(f"v_and_b32 v9, 3, v2")
e(f"s_lshl_b32 s{S_H1024}, s{S_WL}, 10")
e(f"s_lshl_b32 s{S_W2048}, s{S_WL}, 11")
e(f"s_cmp_ge_u32 s{S_W}, 4")
e("s_cbranch_scc1 L_loader")

def mk_srd(g, r, plo, off_sreg, nbytes):
    e = g.e
    if off_sreg is None:
        e(f"s_mov_b32 s{r}, s{plo}")
        e(f"s_mov_b32 s{r+1}, s{plo+1}")
    else:
        e(f"s_add_u32 s{r}, s{plo}, s{off_sreg}")
        e(f"s_addc_u32 s{r+1}, s{plo+1}, 0")
    e(f"s_mov_b32 s{r+2}, {nbytes}")
    e(f"s_mov_b32 s{r+3}, 0x00020000")

def common_scalars(g):
    mk_srd(g, SRD_OUT, S_KA+10, None, 8*64*640*2)
    mk_srd(g, SRD_DBG, S_KA+12, None, 256)
    mk_srd(g, SRD_WS, S_KA+14, None, WS_BYTES)

def common_scalars2(g):
    e = g.e
    e(f"s_lshl_b32 s62, s{S_B}, 5")
    e(f"s_add_u32 s62, s62, s{S_H}")
    e(f"s_lshl_b32 s{S_PB}, s62, 13")
    e(f"s_lshl_b32 s63, s62, 7")
    e(f"s_add_u32 s{S_FLGO}, s63, {FLG}")
    e(f"s_lshl_b32 s62, s{S_B}, 5")
    e(f"s_lshl_b32 s63, s{S_G}, 2")
    e(f"s_add_u32 s63, s63, s62")
    e(f"s_lshl_b32 s63, s63, 7")
    e(f"s_add_u32 s{S_FLGP}, s63, {FLG}")
    e(f"s_add_u32 s63, s62, s{S_Q}")
    e(f"s_lshl_b32 s63, s63, 7")
    e(f"s_add_u32 s{S_FLGR}, s63, {FLG}")
    e(f"s_lshl_b32 s62, s{S_B}, 2")
    e(f"s_add_u32 s62, s62, s{S_Q}")
    e(f"s_lshl_b32 s63, s62, 3")
    e(f"s_add_u32 s63, s63, s{S_G}")
    e(f"s_mul_i32 s63, s63, 20480")
    e(f"s_add_u32 s63, s63, {PART}")
    e(f"s_mul_i32 s{S_PARTW}, s{S_WL}, 5120")
    e(f"s_add_u32 s{S_PARTW}, s{S_PARTW}, s63")
    e(f"s_mul_i32 s62, s62, {8*20480}")
    e(f"s_mul_i32 s63, s{S_G}, 2560")
    e(f"s_add_u32 s62, s62, s63")
    e(f"s_add_u32 s{S_PARTR}, s62, {PART}")
    e(f"s_lshr_b32 s62, s{S_G}, 2")
    e(f"s_lshl_b32 s62, s62, 1")
    e(f"s_and_b32 s63, s{S_G}, 1")
    e(f"s_add_u32 s62, s62, s63")
    e(f"s_lshl_b32 s62, s62, 4")
    e(f"s_lshl_b32 s63, s{S_B}, 6")
    e(f"s_add_u32 s62, s62, s63")
    e(f"s_mul_i32 s62, s62, 1280")
    e(f"s_mul_i32 s63, s{S_Q}, 320")
    e(f"s_add_u32 s62, s62, s63")
    e(f"s_lshr_b32 s63, s{S_G}, 1")
    e(f"s_and_b32 s63, s63, 1")
    e(f"s_mul_i32 s63, s63, 160")
    e(f"s_add_u32 s{S_OUTO}, s62, s63")

def poll_loop(g, issue_fn, datareg, lanes_mask, first_issued=False):
    e = g.e
    l0 = g.newlabel(); l1 = g.newlabel()
    e(f"s_mov_b32 s{S_CNT}, 0")
    e(f"s_mov_b64 s[62:63], exec")
    e(f"s_mov_b64 exec, {lanes_mask}")
    if not first_issued:
        issue_fn()
        e("s_waitcnt vmcnt(0)")
    g.label(l0)
    e(f"v_cmp_ne_u32 vcc, 1, v{datareg}")
    e(f"s_cbranch_vccz {l1}")
    e(f"s_add_u32 s{S_CNT}, s{S_CNT}, 1")
    e(f"s_cmp_gt_u32 s{S_CNT}, 200000")
    e(f"s_cbranch_scc1 {l1}")
    issue_fn()
    e("s_waitcnt vmcnt(0)")
    e(f"s_branch {l0}")
    g.label(l1)
    e(f"s_mov_b64 exec, s[62:63]")

def gather(g, tile_sreg):
    e = g.e
    e(f"v_mul_u32_u24 v{T[8]}, 1280, v{V_M}")
    e(f"v_lshl_add_u32 v{T[8]}, v{V_G4}, 3, v{T[8]}")
    e(f"v_lshlrev_b32 v{T[0]}, 9, v{V_LANE}")
    e(f"s_lshr_b32 s{S_T3}, s{S_G}, 1")
    e(f"s_lshl_b32 s{S_T3}, s{S_T3}, 2")
    e(f"s_add_u32 s{S_T3}, s{S_T3}, 16")
    e(f"s_add_u32 s{S_T3}, s{S_T3}, s{S_FLGR}")
    def issue(): e(f"buffer_load_dword v{T[1]}, v{T[0]}, {srd(SRD_WS)}, s{S_T3} offen sc1")
    poll_loop(g, issue, T[1], "0xff")
    e(f"s_lshl_b32 s62, s{tile_sreg}, 9")
    e(f"s_add_u32 s{S_T3}, s{S_PARTR}, s62")
    for src in range(8):
        r = GR + src*2
        e(f"s_add_u32 s62, s{S_T3}, {src*20480}")
        e(f"buffer_load_dwordx2 {vr(r,2)}, v{V_L8}, {srd(SRD_WS)}, s62 offen sc1")
    for src in range(8):
        r = GR + src*2
        e(f"s_waitcnt vmcnt({7-src})")
        for d in range(2):
            if src == 0:
                e(f"v_lshlrev_b32 v{T[2+2*d]}, 16, v{r+d}")
                e(f"v_and_b32 v{T[3+2*d]}, 0xffff0000, v{r+d}")
            else:
                e(f"v_lshlrev_b32 v{T[6]}, 16, v{r+d}")
                e(f"v_and_b32 v{T[7]}, 0xffff0000, v{r+d}")
                e(f"v_add_f32 v{T[2+2*d]}, v{T[2+2*d]}, v{T[6]}")
                e(f"v_add_f32 v{T[3+2*d]}, v{T[3+2*d]}, v{T[7]}")
    e(f"v_cvt_pk_bf16_f32 v{T[6]}, v{T[2]}, v{T[3]}")
    e(f"v_cvt_pk_bf16_f32 v{T[7]}, v{T[4]}, v{T[5]}")
    e(f"s_lshl_b32 s62, s{tile_sreg}, 5")
    e(f"s_add_u32 s62, s62, s{S_OUTO}")
    e(f"buffer_store_dwordx2 {vr(T[6],2)}, v{T[8]}, {srd(SRD_OUT)}, s62 offen")

def prof_end(g, who):
    e = g.e
    if PROF == g.role:
        e("s_memrealtime s[96:97]")
        e("s_waitcnt lgkmcnt(0) vmcnt(0)")
        lb = g.newlabel()
        e(f"s_cmp_lg_u32 s{S_W}, {who}")
        e(f"s_cbranch_scc1 {lb}")
        e("s_lshl_b32 s62, s2, 8")
        e(f"s_add_u32 s62, s62, {STAMPS}")
        g.flush_stamps(0)
        e(f"v_writelane_b32 v{V_STAMP}, s96, 63")
        e(f"v_lshlrev_b32 v4, 2, v{V_LANE}")
        e(f"buffer_store_dword v{V_STAMP}, v4, {srd(SRD_WS)}, s62 offen")
        g.label(lb)

C = G(1); e = C.e
if PROF == 1: C.live.append((0, 64)); C.names.append("start"); C.nstamp = 1
e(f"v_bfe_u32 v4, v{V_LANE}, 2, 2")
e(f"v_and_b32 v5, 3, v{V_LANE}")
e(f"v_lshl_add_u32 v6, v{V_G4}, 3, v4")
e("v_lshrrev_b32 v7, 1, v4")
e(f"v_and_b32 v8, 1, v{V_G4}")
e("v_lshl_add_u32 v7, v8, 1, v7")
e("v_mul_u32_u24 v8, 384, v6")
e("v_lshl_add_u32 v8, v5, 3, v8")
e(f"v_mul_u32_u24 v{T[0]}, 3, v9")
for i in range(3):
    e(f"v_add_u32 v{T[1]}, {i}, v{T[0]}")
    e(f"v_xor_b32 v{T[1]}, v{T[1]}, v7")
    e(f"v_lshl_add_u32 v{V_A[i]}, v{T[1]}, 5, v8")
e("v_mul_u32_u24 v8, 320, v6")
e("v_lshl_add_u32 v8, v5, 3, v8")
e(f"v_and_b32 v{T[2]}, 1, v9")
e(f"v_mul_u32_u24 v7, 160, v{T[2]}")
e("v_add_u32 v8, v8, v7")
e(f"v_and_b32 v7, 1, v{V_G4}")
e("v_lshlrev_b32 v7, 5, v7")
e(f"v_add_u32 v{T[3]}, v8, v7")
e(f"v_sub_u32 v{T[4]}, v8, v7")
e(f"v_cmp_eq_u32 vcc, 0, v{T[2]}")
e("s_nop 1")
e(f"v_cndmask_b32 v{T[5]}, v{T[4]}, v{T[3]}, vcc")
e(f"v_cndmask_b32 v{T[6]}, v{T[3]}, v{T[4]}, vcc")
e(f"v_bfe_u32 v7, v{V_M}, 1, 3")
for s_ in range(2):
    e(f"v_add_u32 v8, {4*s_}, v{V_G4}")
    e("v_xor_b32 v8, v8, v7")
    e("v_lshlrev_b32 v8, 4, v8")
    e(f"v_lshl_add_u32 v{T[1]}, v{V_M}, 7, v8")
    e(f"v_add_u32 v{V_B[s_]}, {X_IMG}, v{T[1]}")
    e("v_lshrrev_b32 v4, 1, v9")
    e("v_lshlrev_b32 v4, 12, v4")
    e(f"v_add_u32 v4, v4, v{T[1]}")
    e(f"v_add_u32 v{T[7+s_]}, {V_IMG}, v4")
    e(f"v_mul_u32_u24 v{T[1]}, 384, v{V_M}")
    e(f"v_add_u32 v{V_KR[s_]}, v{T[1]}, v8")
for i in range(3):
    e(f"v_add_u32 v4, {i}, v{T[0]}")
    e("v_lshlrev_b32 v4, 1, v4")
    e(f"v_lshrrev_b32 v5, 1, v{V_G4}")
    e("v_add_u32 v4, v4, v5")
    e("v_xor_b32 v4, v4, v7")
    e("v_lshlrev_b32 v4, 4, v4")
    e(f"v_and_b32 v5, 1, v{V_G4}")
    e("v_lshl_add_u32 v4, v5, 3, v4")
    e(f"v_mul_u32_u24 v5, 384, v{V_M}")
    e(f"v_add_u32 v{V_QW[i]}, v4, v5")
    e(f"v_add_u32 v{V_QW[i]}, {QSLOT*SLOT}, v{V_QW[i]}")
e("v_lshrrev_b32 v4, 1, v9")
e("v_lshlrev_b32 v4, 10, v4")
e(f"v_add_u32 v4, v4, v{V_L16}")
e(f"v_add_u32 v{V_PR}, {PIMG}, v4")
e(f"v_mov_b32 v{V_VR[0]}, v{T[7]}")
e(f"v_mov_b32 v{V_VR[1]}, v{T[8]}")
e(f"v_mov_b32 v{V_W[0]}, v{T[5]}")
e(f"v_mov_b32 v{V_W[1]}, v{T[6]}")
e("s_waitcnt lgkmcnt(0)")
C.stamp("kernarg")
common_scalars(C)
common_scalars2(C)

def interleave(mf, rd, per=None):
    rd = list(rd)
    n = len(mf)
    plan = [0]*n
    k = 0; left = len(rd)
    span = max(1, int(n*0.7))
    for idx in range(left):
        plan[min(n-1, idx*span//left)] += 1
    for k in range(n):
        e(mf[k])
        for _ in range(plan[k]):
            t, tag = rd.pop(0); C.ds(t, tag)
    assert not rd

def p1_rd(c, s_):
    base = A_SET[s_]; r = []
    for mt in range(4):
        r.append((f"ds_read_b128 {ar(base + 12 + mt*4, 4)}, v{V_CB[s_]} offset:{mt*2048}", f"c{c}s{s_}"))
    for i in range(3):
        for hf in range(2):
            r.append((f"ds_read_b64_tr_b16 {ar(base + i*4 + 2*hf, 2)}, v{V_CA[i]} offset:{12288*s_ + 1536*hf}", f"c{c}s{s_}"))
    return r
def p1_mf(c, s_):
    base = A_SET[s_]; r = []
    for i in range(3):
        for mt in range(4):
            acc = ACC1 + (i*4 + mt)*4
            cin = "0" if (c == 0 and s_ == 0) else vr(acc, 4)
            r.append(f"v_mfma_f32_16x16x32_bf16 {vr(acc,4)}, {ar(base + i*4,4)}, {ar(base + 12 + mt*4,4)}, {cin}" if not NOMFMA else "s_nop 0")
    return r

for c in range(10):
    sb = LSLOT[c] * SLOT
    C.barrier(f"B{c}")
    for i in range(3): e(f"v_add_u32 v{V_CA[i]}, {sb}, v{V_A[i]}")
    for s_ in range(2): e(f"v_add_u32 v{V_CB[s_]}, {sb}, v{V_B[s_]}")
    if c == 0:
        for t, tag in p1_rd(c, 0): C.ds(t, tag)
    else:
        interleave(p1_mf(c-1, 1), p1_rd(c, 0))
    C.wait_lg(f"c{c}s0")
    interleave(p1_mf(c, 0), p1_rd(c, 1))
    C.wait_lg_all()
C.barrier("B10")
for m in p1_mf(9, 1): e(m)
e("s_nop 7")
for i in range(3):
    for mt in range(4):
        acc = ACC1 + (i*4 + mt)*4
        t0 = T[2*((i*4+mt) % 4)]
        e(f"v_cvt_pk_bf16_f32 v{t0}, v{acc}, v{acc+1}")
        e(f"v_cvt_pk_bf16_f32 v{t0+1}, v{acc+2}, v{acc+3}")
        C.ds(f"ds_write_b64 v{V_QW[i]}, {vr(t0,2)} offset:{mt*6144}", "qw")
e(f"s_mul_i32 s62, s{S_WL}, {16*384}")
e(f"s_add_u32 s62, s62, {QSLOT*SLOT}")
for p in range(2):
    e(f"v_add_u32 v{V_CA[p]}, s62, v{V_KR[p]}")
    e(f"v_add_u32 v{V_CB[p]}, {KSLOT*SLOT}, v{V_KR[p]}")
C.wait_lg_all()
C.barrier("B11")
for s_ in range(6):
    C.ds(f"ds_read_b128 {ar(A_QF + 4*s_, 4)}, v{V_CA[s_&1]} offset:{(s_>>1)*128}", f"sk{s_}")
    for kt in range(4):
        C.ds(f"ds_read_b128 {ar(A_KF + (s_*4+kt)*4, 4)}, v{V_CB[s_&1]} offset:{kt*6144 + (s_>>1)*128}", f"sk{s_}")
for s_ in range(6):
    C.wait_lg(f"sk{s_}")
    for kt in range(4):
        acc = SACC + kt*4
        cin = "0" if s_ == 0 else vr(acc, 4)
        e(f"v_mfma_f32_16x16x32_bf16 {vr(acc,4)}, {ar(A_KF + (s_*4+kt)*4, 4)}, {ar(A_QF + 4*s_, 4)}, {cin}")
C.barrier("B12")

def w_addr(j):
    sb = WSLOT[j] * SLOT
    for s_ in range(2): e(f"v_add_u32 v{V_CB[s_]}, {sb}, v{V_VR[s_]}")
    for p in range(2): e(f"v_add_u32 v{V_CA[p]}, {sb}, v{V_W[p]}")
def w_rd(j, s_):
    base = A_SET[s_]; r = []
    for a in range(2):
        r.append((f"ds_read_b128 {ar(base + a*4, 4)}, v{V_CB[s_]} offset:{a*2048}", f"w{j}s{s_}"))
    for i in range(5):
        for hf in range(2):
            r.append((f"ds_read_b64_tr_b16 {ar(base + 8 + i*4 + 2*hf, 2)}, v{V_CA[i&1]} offset:{i*32 + (32*s_ + 4*hf)*320}", f"w{j}s{s_}"))
    return r
def w_mf(j, s_):
    hs, di = divmod(j, 3)
    base = A_SET[s_]; accb = ACC2[hs & 1]; r = []
    for i in range(5):
        for a in range(2):
            acc = accb + (a*5 + i)*4
            cin = "0" if (di == 0 and s_ == 0) else vr(acc, 4)
            r.append(f"v_mfma_f32_16x16x32_bf16 {vr(acc,4)}, {ar(base + a*4, 4)}, {ar(base + 8 + i*4, 4)}, {cin}" if not NOMFMA else "s_nop 0")
    return r
def pack_ops(hs):
    ops = []
    accb = ACC2[hs & 1]
    for i in range(5):
        for a in range(2):
            acc = accb + (a*5 + i)*4
            for pr in range(2):
                ops.append(f"v_cvt_pk_bf16_f32 v{T[2 + a*2 + pr + 4*(i&1)]}, v{acc+2*pr}, v{acc+2*pr+1}")
        for k in range(4):
            ops.append(f"v_accvgpr_write_b32 a{A_VW + (hs*5+i)*4 + k}, v{T[2+k+4*(i&1)]}")
    return ops
def interleave2(mf, rd, fill):
    rd = list(rd); n = len(mf)
    plan = [0]*n
    span = max(1, int(n*0.7)); left = len(rd)
    for idx in range(left): plan[min(n-1, idx*span//left)] += 1
    for k in range(n):
        e(mf[k])
        for _ in range(plan[k]):
            t, tag = rd.pop(0); C.ds(t, tag)
        for _ in range(2):
            if fill: e(fill.pop(0))

w_addr(0)
for t, tag in w_rd(0, 0) + w_rd(0, 1): C.ds(t, tag)
S = [SACC + i for i in range(16)]
e("s_nop 4")
e(f"v_max3_f32 v{T[2]}, v{S[0]}, v{S[1]}, v{S[2]}")
for i in range(3, 15, 2):
    e(f"v_max3_f32 v{T[2]}, v{T[2]}, v{S[i]}, v{S[i+1]}")
e(f"v_max_f32 v{T[2]}, v{T[2]}, v{S[15]}")
def xreduce(op, r, t):
    for sw in ("v_permlane16_swap_b32", "v_permlane32_swap_b32"):
        e(f"v_mov_b32 v{t}, v{r}")
        e("s_nop 1")
        e(f"{sw} v{r}, v{t}")
        e("s_nop 1")
        e(f"{op} v{r}, v{r}, v{t}")
xreduce("v_max_f32", T[2], T[3])
e(f"s_mov_b32 s{S_C}, {f2u(SCALE_LOG2E):#x}")
e(f"v_mul_f32 v{T[2]}, s{S_C}, v{T[2]}")
for i in range(16):
    e(f"v_fma_f32 v{S[i]}, v{S[i]}, s{S_C}, -v{T[2]}")
for i in range(16):
    e(f"v_exp_f32 v{S[i]}, v{S[i]}")
e("s_nop 0")
e(f"v_add_f32 v{T[4]}, v{S[0]}, v{S[1]}")
for i in range(2, 16):
    e(f"v_add_f32 v{T[4]}, v{T[4]}, v{S[i]}")
xreduce("v_add_f32", T[4], T[3])
e(f"v_rcp_f32 v{T[4]}, v{T[4]}")
e("s_nop 0")
for i in range(16):
    e(f"v_mul_f32 v{S[i]}, v{S[i]}, v{T[4]}")
for s_ in range(2):
    for half in range(2):
        kt = 2*s_ + half
        for pr in range(2):
            d = PF + s_*4 + half*2 + pr
            e(f"v_cvt_pk_bf16_f32 v{d}, v{S[kt*4+2*pr]}, v{S[kt*4+2*pr+1]}")
e(f"s_add_u32 s62, s{S_PB}, s{S_W2048}")
for s_ in range(2):
    e(f"buffer_store_dwordx4 {vr(PF+4*s_,4)}, v{V_L16}, {srd(SRD_WS)}, s62 offen offset:{s_*1024} sc1")
C.stamp("Ppub")
def flag_store(dw_off_bytes):
    e("s_waitcnt vmcnt(0)")
    e(f"s_lshl_b32 s62, s{S_WL}, 2")
    e(f"s_add_u32 s62, s62, s{S_FLGO}")
    e(f"v_mov_b32 v{T[0]}, 0")
    e(f"v_mov_b32 v{T[1]}, 1")
    e("s_mov_b64 s[60:61], exec")
    e("s_mov_b64 exec, 1")
    e(f"buffer_store_dword v{T[1]}, v{T[0]}, {srd(SRD_WS)}, s62 offen offset:{dw_off_bytes} sc1")
    e("s_mov_b64 exec, s[60:61]")
C.wait_lg(f"w0s0")
for m in w_mf(0, 0): e(m)
C.wait_lg_all()
fill = []
for j in range(1, 12):
    C.barrier(f"V{j}")
    w_addr(j)
    interleave2(w_mf(j-1, 1), w_rd(j, 0), fill)
    hs_prev, di_prev = divmod(j-1, 3)
    C.wait_lg(f"w{j}s0")
    if j == 1: flag_store(0)
    if di_prev == 2:
        assert not fill
        fill = ["s_nop 1", "s_nop 1"]*2 + pack_ops(hs_prev)
    interleave2(w_mf(j, 0), w_rd(j, 1), fill)
    C.wait_lg_all()
C.barrier("V12")
interleave2(w_mf(11, 1), [], fill)
assert not fill
e("s_nop 7")
for op in pack_ops(3): e(op)
C.stamp("VWdone")
def p_reads(hs):
    for mt in range(4):
        C.ds(f"ds_read_b128 {ar(A_PF[hs&1] + mt*4, 4)}, v{V_PR} offset:{hs*8192 + mt*2048}", f"p{hs}")
p_reads(0); p_reads(1)
for hs in range(4):
    C.wait_lg(f"p{hs}")
    for i in range(5):
        for mt in range(4):
            acc = OACC + (i*4 + mt)*4
            cin = "0" if hs == 0 else vr(acc, 4)
            e(f"v_mfma_f32_16x16x32_bf16 {vr(acc,4)}, {ar(A_VW + (hs*5+i)*4, 4)}, {ar(A_PF[hs&1] + mt*4, 4)}, {cin}")
    if hs + 2 < 4: p_reads(hs + 2)
C.stamp("final")
e("s_nop 7")
e(f"s_mul_i32 s62, s{S_WL}, 10240")
e(f"v_add_u32 v{T[0]}, s62, v{V_L16}")
e(f"s_xor_b32 s63, s{S_WL}, 2")
e(f"s_mul_i32 s63, s63, 10240")
e(f"v_add_u32 v{T[1]}, s63, v{V_L16}")
e(f"s_add_u32 s{S_T2}, s{S_PARTW}, 4096")
lk1 = C.newlabel(); lkd = C.newlabel()
e(f"s_cmp_ge_u32 s{S_WL}, 2")
e(f"s_cbranch_scc1 {lk1}")
def pair(send_mts, keep_mts):
    n = 0
    for i in range(5):
        for mt in send_mts:
            e(f"ds_write_b128 v{T[0]}, {vr(OACC + (i*4+mt)*4, 4)} offset:{RBUF + n*1024}"); n += 1
    e("s_waitcnt lgkmcnt(0)")
    e("s_barrier")
    n = 0
    for i in range(5):
        for k in range(2):
            e(f"ds_read_b128 {vr(OACC + (i*4+send_mts[k])*4, 4)}, v{T[1]} offset:{RBUF + n*1024}"); n += 1
    e("s_waitcnt lgkmcnt(0)")
    for k in range(2):
        for i in range(5):
            kp = OACC + (i*4+keep_mts[k])*4
            rc = OACC + (i*4+send_mts[k])*4
            for r in range(4):
                e(f"v_add_f32 v{kp+r}, v{kp+r}, v{rc+r}")
            e(f"v_cvt_pk_bf16_f32 v{kp}, v{kp}, v{kp+1}")
            e(f"v_cvt_pk_bf16_f32 v{kp+1}, v{kp+2}, v{kp+3}")
            tp = k*5 + i
            if tp*512 < 4096:
                e(f"buffer_store_dwordx2 {vr(kp,2)}, v{V_L8}, {srd(SRD_WS)}, s{S_PARTW} offen offset:{tp*512} sc1")
            else:
                e(f"buffer_store_dwordx2 {vr(kp,2)}, v{V_L8}, {srd(SRD_WS)}, s{S_T2} offen offset:{tp*512-4096} sc1")
pair([2, 3], [0, 1])
e(f"s_branch {lkd}")
C.label(lk1)
pair([0, 1], [2, 3])
C.label(lkd)
C.nbar += 1
C.stamp("partpub")
flag_store(16)
C.stamp("flagpub")
gather(C, S_WL)
C.stamp("done")
prof_end(C, 0)
e("s_endpgm")

def gen_loader(L, var):
    global e
    e = L.e
    def div_small(dst, src, d):
        magic = {24: 2731, 20: 3277}[d]
        e(f"v_mul_u32_u24 v{dst}, {magic}, v{src}")
        e(f"v_lshrrev_b32 v{dst}, 16, v{dst}")
    e("v_lshlrev_b32 v3, 4, v9")
    e(f"s_mul_i32 s{S_W6144}, s{S_WL}, 6144")
    e(f"s_mul_i32 s{S_W5120}, s{S_WL}, 5120")
    for j in range(6):
        e(f"v_add_u32 v4, {64*j}, v{V_LANE}")
        div_small(5, 4, 24)
        e("v_mul_u32_u24 v6, 24, v5")
        e("v_sub_u32 v6, v4, v6")
        e("v_bfe_u32 v7, v5, 1, 1")
        e("v_bfe_u32 v8, v5, 3, 1")
        e("v_lshl_add_u32 v7, v8, 1, v7")
        e("v_lshlrev_b32 v7, 1, v7")
        e("v_xor_b32 v6, v6, v7")
        e("v_add_u32 v5, v5, v3")
        e("v_mul_u32_u24 v5, 12288, v5")
        e(f"v_lshl_add_u32 v{V_WQ[j]}, v6, 4, v5")
    for j in range(2):
        e(f"v_add_u32 v4, {64*j}, v{V_LANE}")
        e("v_lshrrev_b32 v5, 3, v4")
        e("v_and_b32 v6, 7, v4")
        e("v_bfe_u32 v7, v5, 1, 3")
        e("v_xor_b32 v6, v6, v7")
        e("v_add_u32 v5, v5, v3")
        e("v_mul_u32_u24 v7, 1280, v5")
        e(f"v_lshl_add_u32 v{V_X[j]}, v6, 4, v7")
        e("v_mul_u32_u24 v7, 384, v5")
        e(f"v_lshl_add_u32 v{V_V[j]}, v6, 4, v7")
    e(f"s_mul_i32 s62, s{S_Q}, 160")
    e(f"s_mul_i32 s63, s{S_WL}, 40")
    e("s_add_u32 s62, s62, s63")
    e(f"v_min_u32 v4, 39, v{V_LANE}")
    e("v_add_u32 v4, s62, v4")
    e(f"v_lshlrev_b32 v{T[5]}, 7, v4")
    e(f"s_mul_i32 s62, s{S_B}, 48")
    e(f"s_mul_i32 s63, s{S_WL}, 12")
    e("s_add_u32 s62, s62, s63")
    e(f"v_min_u32 v4, 11, v{V_LANE}")
    e("v_add_u32 v4, s62, v4")
    e("v_mul_u32_u24 v5, 21846, v4")
    e("v_lshrrev_b32 v5, 16, v5")
    e("v_mul_u32_u24 v6, 3, v5")
    e("v_sub_u32 v6, v4, v6")
    e("v_add_u32 v5, 512, v5")
    e("v_mul_u32_u24 v5, 12288, v5")
    e(f"v_lshl_add_u32 v{T[6]}, v6, 7, v5")
    e("s_waitcnt lgkmcnt(0)")
    L.stamp("kernarg")
    e(f"s_mul_i32 s62, s{S_B}, 81920")
    mk_srd(L, SRD_X, S_KA+0, 62, 81920)
    e(f"s_mul_i32 s62, s{S_H}, 384")
    mk_srd(L, SRD_WQ, S_KA+6, 62, 640*12288 - 31*384)
    e(f"s_mov_b32 s{S_KC}, s{S_B}")
    def dma(vaddr, srdreg, soff, m0s, m0const, tag):
        e(f"s_add_u32 m0, s{m0s}, {m0const}")
        e("s_nop 0")
        so = f"s{soff}" if soff is not None else "0"
        L.vmem(f"buffer_load_dwordx4 v{vaddr}, {srd(srdreg)}, {so} offen {NT}lds", tag)
    def load_L(c):
        sb = LSLOT[c] * SLOT
        e(f"s_mul_i32 s{S_OWQ}, s{S_KC}, {64*12288}")
        e(f"s_lshl_b32 s{S_OX}, s{S_KC}, 7")
        for j in range(6): dma(V_WQ[j], SRD_WQ, S_OWQ, S_W6144, sb + WQ_IMG + j*1024, f"L{c}")
        for j in range(2): dma(V_X[j], SRD_X, S_OX, S_W2048, sb + X_IMG + j*1024, f"L{c}")
        e(f"s_add_u32 s{S_KC}, s{S_KC}, 1")
        e(f"s_cmp_ge_u32 s{S_KC}, 10")
        e(f"s_cselect_b32 s{S_KC}, 0, s{S_KC}")
    load_L(0)
    if int(os.environ.get("PRE", "1")):
        L.vmem(f"buffer_load_dword v{V_PRE[0]}, v{T[5]}, {srd(SRD_X)}, 0 offen {NT}", "pre")
        L.vmem(f"buffer_load_dword v{V_PRE[1]}, v{T[6]}, {srd(SRD_WQ)}, 0 offen {NT}", "pre")
    load_L(1)
    e(f"s_lshl_b32 s62, s{S_B}, 5")
    e(f"s_add_u32 s63, s62, s{S_H}")
    e(f"s_mul_i32 s63, s63, 24576")
    mk_srd(L, SRD_K, S_KA+2, 63, 24576)
    e(f"s_lshl_b32 s63, s{S_G}, 2")
    e(f"s_add_u32 s63, s63, s62")
    e(f"s_mul_i32 s63, s63, 24576")
    mk_srd(L, SRD_V, S_KA+4, 63, 4*24576)
    e(f"s_mul_i32 s62, s{S_G}, {768*1280}")
    e(f"s_mul_i32 s63, s{S_Q}, 320")
    e(f"s_add_u32 s62, s62, s63")
    mk_srd(L, SRD_WO, S_KA+8, 62, 768*1280 - 960)
    common_scalars(L)
    common_scalars2(L)
    e(f"s_lshr_b32 s62, s{S_B}, 1")
    e(f"s_add_u32 s62, s62, s{S_Q}")
    e(f"s_and_b32 s{S_RH}, s62, 3")
    e(f"s_and_b32 s62, s{S_B}, 1")
    e(f"s_lshl_b32 s{S_RD}, s62, 1")
    lb = L.newlabel()
    e(f"s_cmp_lg_u32 s{S_WL}, 0")
    e(f"s_cbranch_scc1 {lb}")
    e(f"v_lshlrev_b32 v4, 2, v{V_LANE}")
    e("v_mov_b32 v5, 0")
    e("s_mov_b64 s[62:63], exec")
    e("s_mov_b64 exec, 0xff")
    L.vmem(f"buffer_store_dword v5, v4, {srd(SRD_WS)}, s{S_FLGO} offen sc1", "clr", "st")
    e("s_mov_b64 exec, s[62:63]")
    L.label(lb)
    for j in range(6):
        e(f"v_add_u32 v4, {64*j}, v{V_LANE}")
        div_small(5, 4, 24)
        e("v_mul_u32_u24 v6, 24, v5")
        e("v_sub_u32 v6, v4, v6")
        e("v_bfe_u32 v7, v5, 1, 3")
        e("v_xor_b32 v6, v6, v7")
        e("v_add_u32 v5, v5, v3")
        e("v_mul_u32_u24 v5, 384, v5")
        e(f"v_lshl_add_u32 v{V_K[j]}, v6, 4, v5")
    for j in range(5):
        e(f"v_add_u32 v4, {64*j}, v{V_LANE}")
        div_small(5, 4, 20)
        e("v_mul_u32_u24 v6, 20, v5")
        e("v_sub_u32 v6, v4, v6")
        e("v_bfe_u32 v7, v5, 3, 1")
        e("v_lshlrev_b32 v7, 1, v7")
        e("v_xor_b32 v6, v6, v7")
        e("v_add_u32 v5, v5, v3")
        e("v_mul_u32_u24 v5, 1280, v5")
        e(f"v_lshl_add_u32 v{V_WO[j]}, v6, 4, v5")
    def w_offsets(j):
        hs, di = divmod(j, 3)
        e(f"s_add_u32 s62, s{S_RH}, {hs}")
        e("s_and_b32 s62, s62, 3")
        e(f"s_add_u32 s63, s{S_RD}, {di}")
        e("s_cmp_ge_u32 s63, 3")
        e(f"s_cselect_b32 s{S_T2}, 3, 0")
        e(f"s_sub_u32 s63, s63, s{S_T2}")
        e(f"s_mul_i32 s{S_OWO}, s62, {192*1280}")
        e(f"s_mul_i32 s{S_T2}, s63, {64*1280}")
        e(f"s_add_u32 s{S_OWO}, s{S_OWO}, s{S_T2}")
        e(f"s_mul_i32 s{S_OV}, s62, 24576")
        e(f"s_lshl_b32 s{S_T2}, s63, 7")
        e(f"s_add_u32 s{S_OV}, s{S_OV}, s{S_T2}")
    def load_W(j):
        sb = WSLOT[j] * SLOT
        w_offsets(j)
        for jj in range(5): dma(V_WO[jj], SRD_WO, S_OWO, S_W5120, sb + WO_IMG + jj*1024, f"W{j}")
        for jj in range(2): dma(V_V[jj], SRD_V, S_OV, S_W2048, sb + V_IMG + jj*1024, f"W{j}")
    def pre_V(j):
        w_offsets(j)
        e(f"v_and_b32 v4, 15, v{V_LANE}")
        e("v_add_u32 v4, v4, v3")
        e("v_mul_u32_u24 v4, 384, v4")
        L.vmem(f"buffer_load_dword v{V_PRE[2]}, v4, {srd(SRD_V)}, s{S_OV} offen {NT}", "pre")
    def load_K():
        for j in range(6): dma(V_K[j], SRD_K, None, S_W6144, KSLOT*SLOT + j*1024, "K")
    def p_loads():
        e(f"s_lshl_b32 s62, s{S_B}, 5")
        e(f"s_lshl_b32 s63, s{S_G}, 2")
        e(f"s_add_u32 s{S_T3}, s62, s63")
        e(f"s_add_u32 s62, s{S_RH}, s{S_WL}")
        e("s_and_b32 s62, s62, 3")
        e(f"s_add_u32 s62, s62, s{S_T3}")
        e("s_lshl_b32 s62, s62, 13")
        for f in range(8):
            if f == 4: e("s_add_u32 s62, s62, 4096")
            L.vmem(f"buffer_load_dwordx4 {vr(V_PD + f*4, 4)}, v{V_L16}, {srd(SRD_WS)}, s62 offen offset:{(f%4)*1024} sc1", "pld")
    names = [f"B{i}" for i in range(13)] + [f"V{j}" for j in range(1, 13)]
    for tau in range(25):
        if tau <= 9: L.wait_vm(f"L{tau}")
        if tau == 11: L.wait_vm("K")
        if 12 <= tau <= 23: L.wait_vm(f"W{tau-12}")
        if tau == 24:
            L.wait_vm("pld")
            e(f"s_lshl_b32 s62, s{S_WL}, 13")
            e(f"s_add_u32 s62, s62, {PIMG}")
            e(f"v_add_u32 v{T[2]}, s62, v{V_L16}")
            for f in range(8):
                L.ds(f"ds_write_b128 v{T[2]}, {vr(V_PD + f*4, 4)} offset:{f*1024}", "pw")
            L.wait_lg_all()
        L.barrier(names[tau])
        if 0 <= tau <= 7: load_L(tau + 2)
        if tau == KPOS: load_K()
        if tau == W0POS[var]: load_W(0)
        if tau == W1POS[var]:
            load_W(1); pre_V(2)
        if tau == W2POS: load_W(2)
        if tau == 12: load_W(3); load_W(4)
        if 13 <= tau <= 19: load_W(tau - 8)
        if tau == 3:
            lb = L.newlabel()
            e(f"s_cmp_lg_u32 s{S_WL}, 0")
            e(f"s_cbranch_scc1 {lb}")
            e(f"s_lshl_b32 s62, s{S_B}, 5")
            e(f"v_mov_b32 v4, s62")
            e("v_mov_b32 v5, 1")
            e("s_mov_b64 s[62:63], exec")
            e("s_mov_b64 exec, 1")
            L.e("s_waitcnt vmcnt(%d)" % sum(1 for (t,k) in L.vm[[i for i,(t,k) in enumerate(L.vm) if t=="clr"][0]+1:] if k=="ld"))
            L.vmem(f"buffer_atomic_add v5, v4, {srd(SRD_DBG)}, 0 offen sc1", "arr", "st")
            e("s_mov_b64 exec, s[62:63]")
            L.label(lb)
        if tau == 15:
            e(f"s_lshl_b32 s62, s{S_B}, 5")
            e(f"v_mov_b32 v{T[2]}, s62")
            L.vmem(f"buffer_load_dword v{T[1]}, v{T[2]}, {srd(SRD_DBG)}, 0 offen sc1", "cnt")
        if tau == 17:
            L.wait_vm("cnt")
            l0 = L.newlabel(); l1 = L.newlabel()
            e(f"s_mov_b32 s{S_CNT}, 0")
            L.label(l0)
            e(f"v_readfirstlane_b32 s62, v{T[1]}")
            e("s_cmp_ge_u32 s62, 32")
            e(f"s_cbranch_scc1 {l1}")
            e(f"s_add_u32 s{S_CNT}, s{S_CNT}, 1")
            e(f"s_cmp_gt_u32 s{S_CNT}, 200000")
            e(f"s_cbranch_scc1 {l1}")
            e("s_sleep 2")
            e(f"buffer_load_dword v{T[1]}, v{T[2]}, {srd(SRD_DBG)}, 0 offen sc1")
            e("s_waitcnt vmcnt(0)")
            e(f"s_branch {l0}")
            L.label(l1)
            e(f"s_add_u32 s62, s{S_RH}, s{S_WL}")
            e("s_and_b32 s62, s62, 3")
            e(f"s_lshl_b32 s62, s62, 7")
            e(f"s_add_u32 s{S_KC}, s62, s{S_FLGP}")
            e(f"v_lshlrev_b32 v{T[4]}, 2, v{V_LANE}")
            L.vmem(f"buffer_load_dword v{T[3]}, v{T[4]}, {srd(SRD_WS)}, s{S_KC} offen sc1", "pfl")
        if tau == 20:
            L.wait_vm("pfl")
            def issue(): e(f"buffer_load_dword v{T[3]}, v{T[4]}, {srd(SRD_WS)}, s{S_KC} offen sc1")
            poll_loop(L, issue, T[3], "0xf", first_issued=True)
            p_loads()
    L.stamp("pimg")
    L.barrier("R")
    lb = L.newlabel()
    e(f"s_cmp_lg_u32 s{S_W}, 4")
    e(f"s_cbranch_scc1 {lb}")
    e(f"s_mov_b32 s{S_KC}, 4")
    gather(L, S_KC)
    L.label(lb)
    L.stamp("done")
    prof_end(L, 4)

Ls = []
D = G(0); D.label("L_loader")
for v in range(1, NVAR):
    D.e(f"s_and_b32 s62, s{S_B}, {NVAR-1}")
    D.e(f"s_cmp_eq_u32 s62, {v}")
    D.e(f"s_cbranch_scc1 L_var{v}")
for v in range(NVAR):
    H = G(2)
    if v: H.label(f"L_var{v}")
    if PROF == 2: H.live.append((0, 64)); H.names.append("start"); H.nstamp = 1
    gen_loader(H, v)
    if v == NVAR-1: H.label("L_end")
    H.e("s_endpgm")
    assert C.nbar == H.nbar, (C.nbar, H.nbar)
    Ls.append(H)

out += P.o + C.o + D.o
for H in Ls: out += H.o
out += ['.section .rodata,"a"', ".p2align 6", f".amdhsa_kernel {NAME}", "  .amdhsa_next_free_vgpr 256", "  .amdhsa_next_free_sgpr 102",
        "  .amdhsa_accum_offset 120", "  .amdhsa_group_segment_fixed_size 0", "  .amdhsa_kernarg_size 64", "  .amdhsa_user_sgpr_count 2",
        "  .amdhsa_user_sgpr_kernarg_segment_ptr 1", "  .amdhsa_system_sgpr_workgroup_id_x 1", ".end_amdhsa_kernel"]
print("\n".join(out))
if PROF: open("names%d.txt" % PROF, "w").write(",".join({1: C, 2: Ls[0]}[PROF].names))
```

```python
import sys, os, math, struct

PROF = int(os.environ.get("PROF", "0"))
NOMFMA = int(os.environ.get("NOMFMA", "0"))
NT = "nt " if int(os.environ.get("NT", "1")) else ""
W2POS = int(os.environ.get("W2POS", "11"))
HOTLEAD = int(os.environ.get("HOTLEAD", "2"))

def f2u(f): return struct.unpack("<I", struct.pack("<f", f))[0]

class G:
    lab = 0
    def __init__(self, role):
        self.role = role
        self.o = []; self.vm = []; self.lg = []
        self.nstamp = 0; self.live = []; self.names = []; self.nbar = 0
    def e(self, s): self.o.append("    " + s)
    def label(self, s): self.o.append(s + ":")
    def newlabel(self, p="L"):
        G.lab += 1
        return f"{p}_{G.lab}"
    def vmem(self, s, tag, kind="ld"):
        self.e(s); self.vm.append((tag, kind))
    def wait_vm(self, tag):
        idxs = [i for i, (t, k) in enumerate(self.vm) if t == tag]
        if not idxs: return
        idx = max(idxs)
        n = sum(1 for (t, k) in self.vm[idx+1:] if k == "ld")
        self.e(f"s_waitcnt vmcnt({min(n, 63)})")
    def ds(self, s, tag):
        self.e(s); self.lg.append(tag)
    def wait_lg(self, tag):
        idx = max(i for i, t in enumerate(self.lg) if t == tag)
        n = len(self.lg) - 1 - idx
        self.e(f"s_waitcnt lgkmcnt({min(n, 15)})")
    def wait_lg_all(self):
        self.e("s_waitcnt lgkmcnt(0)")
    def barrier(self, name=""):
        self.e("s_barrier"); self.nbar += 1
        if name: self.stamp(name)
    def stamp(self, name=""):
        if PROF == self.role:
            r = 64 + 2*(self.nstamp % 8)
            self.flush_stamps(keep=7)
            self.e(f"s_memtime s[{r}:{r+1}]")
            self.live.append((self.nstamp, r))
            self.names.append(name or str(self.nstamp))
            self.nstamp += 1
    def flush_stamps(self, keep=0):
        while len(self.live) > keep:
            n, r = self.live.pop(0)
            self.e(f"v_writelane_b32 v{V_STAMP}, s{r}, {n}")

SLOT = 32768
WQ_IMG = 0; X_IMG = 24576
WO_IMG = 0; V_IMG = 20480
PREG = 0
PART = 2 << 20
FLG = 8 << 20
STAMPS = 16 << 20
WS_BYTES = 268435456
SCALE_LOG2E = (192 ** -0.5) * math.log2(math.e)

S_W = 3; S_B = 4; S_G = 5; S_Q = 6; S_H = 7
SRD_X = 8; SRD_WQ = 12; SRD_K = 16; SRD_V = 20; SRD_WO = 24; SRD_WS = 28; SRD_OUT = 32; SRD_DBG = 36
S_KA = 40
S_C = 44; S_PB = 45; S_T2 = 46; S_T3 = 47; S_CNT = 48; S_PARTW = 50; S_PARTR = 51; S_OUTO = 52; S_FLGO = 53
S_WL = 98; S_H1024 = 99; S_W2048 = 100
S_FLGR = 42; S_FLGP = 43
def srd(r): return f"s[{r}:{r+3}]"
def vr(b, n): return f"v[{b}:{b+n-1}]"
def ar(b, n): return f"a[{b}:{b+n-1}]"

V_LANE = 1; V_L16 = 10; V_L8 = 11; V_M = 12; V_G4 = 13
T = list(range(14, 24))
V_STAMP = 39
V_WQ = list(range(24, 30)); V_X = [30, 31]; V_K = list(range(32, 38)); V_WO = list(range(40, 45)); V_V = [45, 46]
V_PD = 48
V_PRE = [80, 81, 82, 83, 84, 85]
S_KC = 56; S_OWQ = 57; S_OX = 58; S_W6144 = 59; S_W5120 = 60; S_RH = 61; S_RD = 41; S_OWO = 40; S_OV = 101
V_A = [24, 25, 26]; V_B = [27, 28]; V_CA = [29, 30, 31]; V_CB = [32, 33]; V_QW = [34, 35, 36]; V_KR = [37, 38]
V_VR = [2, 3]; V_W = [4, 5]; V_PR = 6
ACC1 = 40; SACC = 40; PF = 56; ACC2 = [40, 80]; OACC = 40
A_SET = [0, 28]; A_KF = 0; A_QF = 96; A_VW = 56; A_PF = [0, 16]
GR = 48

LSLOT = [c % 3 for c in range(10)]
KSLOT = 1; QSLOT = 0
WSLOT = [3, 4, 2, 0, 1, 3, 4, 2, 0, 1, 3, 4]
PIMG = 2 * SLOT
RBUF = 0
NVAR = int(os.environ.get("NVAR", "4"))
W0POS = [int(x) for x in os.environ.get("W0POS", "1,2,3,4").split(",")]
W1POS = [int(x) for x in os.environ.get("W1POS", "5,6,7,8").split(",")]
KPOS = int(os.environ.get("KPOS", "8"))

NAME = "standalone__mha_block_cached__near_ridge_kernel"
hdr = open("standalone__mha_block_cached__near_ridge.s.ref").read().split("\n")
head = [l for l in hdr if l.startswith(";") and "@launch" not in l and "Override" not in l and "grid=ceil" not in l]
out = head + [f"; @launch grid=(256,1,1) block=(512,1,1) lds=163840",
 '.amdgcn_target "amdgcn-amd-amdhsa--gfx950"', ".text", f".globl {NAME}", ".p2align 8", f".type {NAME},@function", f"{NAME}:"]

P = G(0); e = P.e
e("s_cmp_ge_u32 s2, 256")
e("s_cbranch_scc1 L_end")
if PROF in (1, 2): e("s_memtime s[64:65]")
if PROF == 9: e("s_memrealtime s[90:91]")
e(f"s_load_dwordx16 s[{S_KA}:{S_KA+15}], s[0:1], 0")
e(f"s_and_b32 s{S_G}, s2, 7")
e("s_lshr_b32 s62, s2, 3")
e(f"s_and_b32 s{S_Q}, s62, 3")
e(f"s_lshr_b32 s{S_B}, s2, 5")
e(f"s_lshl_b32 s{S_H}, s{S_G}, 2")
e(f"s_add_u32 s{S_H}, s{S_H}, s{S_Q}")
e(f"v_lshrrev_b32 v2, 6, v0")
e(f"v_and_b32 v{V_LANE}, 63, v0")
e(f"v_readfirstlane_b32 s{S_W}, v2")
e(f"v_and_b32 v{V_M}, 15, v{V_LANE}")
e(f"v_lshrrev_b32 v{V_G4}, 4, v{V_LANE}")
e(f"v_lshlrev_b32 v{V_L16}, 4, v{V_LANE}")
e(f"v_lshlrev_b32 v{V_L8}, 3, v{V_LANE}")
e(f"s_and_b32 s{S_WL}, s{S_W}, 3")
e(f"v_and_b32 v9, 3, v2")
e(f"s_lshl_b32 s{S_H1024}, s{S_WL}, 10")
e(f"s_lshl_b32 s{S_W2048}, s{S_WL}, 11")
e(f"s_cmp_ge_u32 s{S_W}, 4")
e("s_cbranch_scc1 L_loader")

def mk_srd(g, r, plo, off_sreg, nbytes):
    e = g.e
    if off_sreg is None:
        e(f"s_mov_b32 s{r}, s{plo}")
        e(f"s_mov_b32 s{r+1}, s{plo+1}")
    else:
        e(f"s_add_u32 s{r}, s{plo}, s{off_sreg}")
        e(f"s_addc_u32 s{r+1}, s{plo+1}, 0")
    e(f"s_mov_b32 s{r+2}, {nbytes}")
    e(f"s_mov_b32 s{r+3}, 0x00020000")

def common_scalars(g):
    mk_srd(g, SRD_OUT, S_KA+10, None, 8*64*640*2)
    mk_srd(g, SRD_DBG, S_KA+12, None, 256)
    mk_srd(g, SRD_WS, S_KA+14, None, WS_BYTES)

def common_scalars2(g):
    e = g.e
    e(f"s_lshl_b32 s62, s{S_B}, 5")
    e(f"s_add_u32 s62, s62, s{S_H}")
    e(f"s_lshl_b32 s{S_PB}, s62, 13")
    e(f"s_lshl_b32 s63, s62, 7")
    e(f"s_add_u32 s{S_FLGO}, s63, {FLG}")
    e(f"s_lshl_b32 s62, s{S_B}, 5")
    e(f"s_lshl_b32 s63, s{S_G}, 2")
    e(f"s_add_u32 s63, s63, s62")
    e(f"s_lshl_b32 s63, s63, 7")
    e(f"s_add_u32 s{S_FLGP}, s63, {FLG}")
    e(f"s_add_u32 s63, s62, s{S_Q}")
    e(f"s_lshl_b32 s63, s63, 7")
    e(f"s_add_u32 s{S_FLGR}, s63, {FLG}")
    e(f"s_lshl_b32 s62, s{S_B}, 2")
    e(f"s_add_u32 s62, s62, s{S_Q}")
    e(f"s_lshl_b32 s63, s62, 3")
    e(f"s_add_u32 s63, s63, s{S_G}")
    e(f"s_mul_i32 s63, s63, 20480")
    e(f"s_add_u32 s63, s63, {PART}")
    e(f"s_mul_i32 s{S_PARTW}, s{S_WL}, 5120")
    e(f"s_add_u32 s{S_PARTW}, s{S_PARTW}, s63")
    e(f"s_mul_i32 s62, s62, {8*20480}")
    e(f"s_mul_i32 s63, s{S_G}, 2560")
    e(f"s_add_u32 s62, s62, s63")
    e(f"s_add_u32 s{S_PARTR}, s62, {PART}")
    e(f"s_lshr_b32 s62, s{S_G}, 2")
    e(f"s_lshl_b32 s62, s62, 1")
    e(f"s_and_b32 s63, s{S_G}, 1")
    e(f"s_add_u32 s62, s62, s63")
    e(f"s_lshl_b32 s62, s62, 4")
    e(f"s_lshl_b32 s63, s{S_B}, 6")
    e(f"s_add_u32 s62, s62, s63")
    e(f"s_mul_i32 s62, s62, 1280")
    e(f"s_mul_i32 s63, s{S_Q}, 320")
    e(f"s_add_u32 s62, s62, s63")
    e(f"s_lshr_b32 s63, s{S_G}, 1")
    e(f"s_and_b32 s63, s63, 1")
    e(f"s_mul_i32 s63, s63, 160")
    e(f"s_add_u32 s{S_OUTO}, s62, s63")

def poll_loop(g, issue_fn, datareg, lanes_mask, first_issued=False):
    e = g.e
    l0 = g.newlabel(); l1 = g.newlabel()
    e(f"s_mov_b32 s{S_CNT}, 0")
    e(f"s_mov_b64 s[62:63], exec")
    e(f"s_mov_b64 exec, {lanes_mask}")
    if not first_issued:
        issue_fn()
        e("s_waitcnt vmcnt(0)")
    g.label(l0)
    e(f"v_cmp_ne_u32 vcc, 1, v{datareg}")
    e(f"s_cbranch_vccz {l1}")
    e(f"s_add_u32 s{S_CNT}, s{S_CNT}, 1")
    e(f"s_cmp_gt_u32 s{S_CNT}, 200000")
    e(f"s_cbranch_scc1 {l1}")
    issue_fn()
    e("s_waitcnt vmcnt(0)")
    e(f"s_branch {l0}")
    g.label(l1)
    e(f"s_mov_b64 exec, s[62:63]")

def gather(g, tile_sreg):
    e = g.e
    e(f"v_mul_u32_u24 v{T[8]}, 1280, v{V_M}")
    e(f"v_lshl_add_u32 v{T[8]}, v{V_G4}, 3, v{T[8]}")
    e(f"v_lshlrev_b32 v{T[0]}, 9, v{V_LANE}")
    e(f"s_lshr_b32 s{S_T3}, s{S_G}, 1")
    e(f"s_lshl_b32 s{S_T3}, s{S_T3}, 2")
    e(f"s_add_u32 s{S_T3}, s{S_T3}, 16")
    e(f"s_add_u32 s{S_T3}, s{S_T3}, s{S_FLGR}")
    def issue(): e(f"buffer_load_dword v{T[1]}, v{T[0]}, {srd(SRD_WS)}, s{S_T3} offen sc1")
    poll_loop(g, issue, T[1], "0xff")
    e(f"s_lshl_b32 s62, s{tile_sreg}, 9")
    e(f"s_add_u32 s{S_T3}, s{S_PARTR}, s62")
    for src in range(8):
        r = GR + src*2
        e(f"s_add_u32 s62, s{S_T3}, {src*20480}")
        e(f"buffer_load_dwordx2 {vr(r,2)}, v{V_L8}, {srd(SRD_WS)}, s62 offen sc1")
    for src in range(8):
        r = GR + src*2
        e(f"s_waitcnt vmcnt({7-src})")
        for d in range(2):
            if src == 0:
                e(f"v_lshlrev_b32 v{T[2+2*d]}, 16, v{r+d}")
                e(f"v_and_b32 v{T[3+2*d]}, 0xffff0000, v{r+d}")
            else:
                e(f"v_lshlrev_b32 v{T[6]}, 16, v{r+d}")
                e(f"v_and_b32 v{T[7]}, 0xffff0000, v{r+d}")
                e(f"v_add_f32 v{T[2+2*d]}, v{T[2+2*d]}, v{T[6]}")
                e(f"v_add_f32 v{T[3+2*d]}, v{T[3+2*d]}, v{T[7]}")
    e(f"v_cvt_pk_bf16_f32 v{T[6]}, v{T[2]}, v{T[3]}")
    e(f"v_cvt_pk_bf16_f32 v{T[7]}, v{T[4]}, v{T[5]}")
    e(f"s_lshl_b32 s62, s{tile_sreg}, 5")
    e(f"s_add_u32 s62, s62, s{S_OUTO}")
    e(f"buffer_store_dwordx2 {vr(T[6],2)}, v{T[8]}, {srd(SRD_OUT)}, s62 offen")

def prof_end(g, who):
    e = g.e
    if PROF == g.role:
        e("s_memrealtime s[96:97]")
        e("s_waitcnt lgkmcnt(0) vmcnt(0)")
        lb = g.newlabel()
        e(f"s_cmp_lg_u32 s{S_W}, {who}")
        e(f"s_cbranch_scc1 {lb}")
        e("s_lshl_b32 s62, s2, 8")
        e(f"s_add_u32 s62, s62, {STAMPS}")
        g.flush_stamps(0)
        e(f"v_writelane_b32 v{V_STAMP}, s96, 63")
        e(f"v_lshlrev_b32 v4, 2, v{V_LANE}")
        e(f"buffer_store_dword v{V_STAMP}, v4, {srd(SRD_WS)}, s62 offen")
        g.label(lb)

C = G(1); e = C.e
if PROF == 1: C.live.append((0, 64)); C.names.append("start"); C.nstamp = 1
e(f"v_bfe_u32 v4, v{V_LANE}, 2, 2")
e(f"v_and_b32 v5, 3, v{V_LANE}")
e(f"v_lshl_add_u32 v6, v{V_G4}, 3, v4")
e("v_lshrrev_b32 v7, 1, v4")
e(f"v_and_b32 v8, 1, v{V_G4}")
e("v_lshl_add_u32 v7, v8, 1, v7")
e("v_mul_u32_u24 v8, 384, v6")
e("v_lshl_add_u32 v8, v5, 3, v8")
e(f"v_mul_u32_u24 v{T[0]}, 3, v9")
for i in range(3):
    e(f"v_add_u32 v{T[1]}, {i}, v{T[0]}")
    e(f"v_xor_b32 v{T[1]}, v{T[1]}, v7")
    e(f"v_lshl_add_u32 v{V_A[i]}, v{T[1]}, 5, v8")
e("v_mul_u32_u24 v8, 320, v6")
e("v_lshl_add_u32 v8, v5, 3, v8")
e(f"v_and_b32 v{T[2]}, 1, v9")
e(f"v_mul_u32_u24 v7, 160, v{T[2]}")
e("v_add_u32 v8, v8, v7")
e(f"v_and_b32 v7, 1, v{V_G4}")
e("v_lshlrev_b32 v7, 5, v7")
e(f"v_add_u32 v{T[3]}, v8, v7")
e(f"v_sub_u32 v{T[4]}, v8, v7")
e(f"v_cmp_eq_u32 vcc, 0, v{T[2]}")
e("s_nop 1")
e(f"v_cndmask_b32 v{T[5]}, v{T[4]}, v{T[3]}, vcc")
e(f"v_cndmask_b32 v{T[6]}, v{T[3]}, v{T[4]}, vcc")
e(f"v_bfe_u32 v7, v{V_M}, 1, 3")
for s_ in range(2):
    e(f"v_add_u32 v8, {4*s_}, v{V_G4}")
    e("v_xor_b32 v8, v8, v7")
    e("v_lshlrev_b32 v8, 4, v8")
    e(f"v_lshl_add_u32 v{T[1]}, v{V_M}, 7, v8")
    e(f"v_add_u32 v{V_B[s_]}, {X_IMG}, v{T[1]}")
    e("v_lshrrev_b32 v4, 1, v9")
    e("v_lshlrev_b32 v4, 12, v4")
    e(f"v_add_u32 v4, v4, v{T[1]}")
    e(f"v_add_u32 v{T[7+s_]}, {V_IMG}, v4")
    e(f"v_mul_u32_u24 v{T[1]}, 384, v{V_M}")
    e(f"v_add_u32 v{V_KR[s_]}, v{T[1]}, v8")
for i in range(3):
    e(f"v_add_u32 v4, {i}, v{T[0]}")
    e("v_lshlrev_b32 v4, 1, v4")
    e(f"v_lshrrev_b32 v5, 1, v{V_G4}")
    e("v_add_u32 v4, v4, v5")
    e("v_xor_b32 v4, v4, v7")
    e("v_lshlrev_b32 v4, 4, v4")
    e(f"v_and_b32 v5, 1, v{V_G4}")
    e("v_lshl_add_u32 v4, v5, 3, v4")
    e(f"v_mul_u32_u24 v5, 384, v{V_M}")
    e(f"v_add_u32 v{V_QW[i]}, v4, v5")
    e(f"v_add_u32 v{V_QW[i]}, {QSLOT*SLOT}, v{V_QW[i]}")
e("v_lshrrev_b32 v4, 1, v9")
e("v_lshlrev_b32 v4, 10, v4")
e(f"v_add_u32 v4, v4, v{V_L16}")
e(f"v_add_u32 v{V_PR}, {PIMG}, v4")
e(f"v_mov_b32 v{V_VR[0]}, v{T[7]}")
e(f"v_mov_b32 v{V_VR[1]}, v{T[8]}")
e(f"v_mov_b32 v{V_W[0]}, v{T[5]}")
e(f"v_mov_b32 v{V_W[1]}, v{T[6]}")
e("s_waitcnt lgkmcnt(0)")
C.stamp("kernarg")
common_scalars(C)
common_scalars2(C)

def interleave(mf, rd, per=None):
    rd = list(rd)
    n = len(mf)
    plan = [0]*n
    k = 0; left = len(rd)
    span = max(1, int(n*0.7))
    for idx in range(left):
        plan[min(n-1, idx*span//left)] += 1
    for k in range(n):
        e(mf[k])
        for _ in range(plan[k]):
            t, tag = rd.pop(0); C.ds(t, tag)
    assert not rd

def p1_rd(c, s_):
    base = A_SET[s_]; r = []
    for mt in range(4):
        r.append((f"ds_read_b128 {ar(base + 12 + mt*4, 4)}, v{V_CB[s_]} offset:{mt*2048}", f"c{c}s{s_}"))
    for i in range(3):
        for hf in range(2):
            r.append((f"ds_read_b64_tr_b16 {ar(base + i*4 + 2*hf, 2)}, v{V_CA[i]} offset:{12288*s_ + 1536*hf}", f"c{c}s{s_}"))
    return r
def p1_mf(c, s_):
    base = A_SET[s_]; r = []
    for i in range(3):
        for mt in range(4):
            acc = ACC1 + (i*4 + mt)*4
            cin = "0" if (c == 0 and s_ == 0) else vr(acc, 4)
            r.append(f"v_mfma_f32_16x16x32_bf16 {vr(acc,4)}, {ar(base + i*4,4)}, {ar(base + 12 + mt*4,4)}, {cin}" if not NOMFMA else "s_nop 0")
    return r

for c in range(10):
    sb = LSLOT[c] * SLOT
    C.barrier(f"B{c}")
    for i in range(3): e(f"v_add_u32 v{V_CA[i]}, {sb}, v{V_A[i]}")
    for s_ in range(2): e(f"v_add_u32 v{V_CB[s_]}, {sb}, v{V_B[s_]}")
    if c == 0:
        for t, tag in p1_rd(c, 0): C.ds(t, tag)
    else:
        interleave(p1_mf(c-1, 1), p1_rd(c, 0))
    C.wait_lg(f"c{c}s0")
    interleave(p1_mf(c, 0), p1_rd(c, 1))
    C.wait_lg_all()
C.barrier("B10")
for m in p1_mf(9, 1): e(m)
e("s_nop 7")
for i in range(3):
    for mt in range(4):
        acc = ACC1 + (i*4 + mt)*4
        t0 = T[2*((i*4+mt) % 4)]
        e(f"v_cvt_pk_bf16_f32 v{t0}, v{acc}, v{acc+1}")
        e(f"v_cvt_pk_bf16_f32 v{t0+1}, v{acc+2}, v{acc+3}")
        C.ds(f"ds_write_b64 v{V_QW[i]}, {vr(t0,2)} offset:{mt*6144}", "qw")
e(f"s_mul_i32 s62, s{S_WL}, {16*384}")
e(f"s_add_u32 s62, s62, {QSLOT*SLOT}")
for p in range(2):
    e(f"v_add_u32 v{V_CA[p]}, s62, v{V_KR[p]}")
    e(f"v_add_u32 v{V_CB[p]}, {KSLOT*SLOT}, v{V_KR[p]}")
C.wait_lg_all()
C.barrier("B11")
for s_ in range(6):
    C.ds(f"ds_read_b128 {ar(A_QF + 4*s_, 4)}, v{V_CA[s_&1]} offset:{(s_>>1)*128}", f"sk{s_}")
    for kt in range(4):
        C.ds(f"ds_read_b128 {ar(A_KF + (s_*4+kt)*4, 4)}, v{V_CB[s_&1]} offset:{kt*6144 + (s_>>1)*128}", f"sk{s_}")
for s_ in range(6):
    C.wait_lg(f"sk{s_}")
    for kt in range(4):
        acc = SACC + kt*4
        cin = "0" if s_ == 0 else vr(acc, 4)
        e(f"v_mfma_f32_16x16x32_bf16 {vr(acc,4)}, {ar(A_KF + (s_*4+kt)*4, 4)}, {ar(A_QF + 4*s_, 4)}, {cin}")
C.barrier("B12")

def w_addr(j):
    sb = WSLOT[j] * SLOT
    for s_ in range(2): e(f"v_add_u32 v{V_CB[s_]}, {sb}, v{V_VR[s_]}")
    for p in range(2): e(f"v_add_u32 v{V_CA[p]}, {sb}, v{V_W[p]}")
def w_rd(j, s_):
    base = A_SET[s_]; r = []
    for a in range(2):
        r.append((f"ds_read_b128 {ar(base + a*4, 4)}, v{V_CB[s_]} offset:{a*2048}", f"w{j}s{s_}"))
    for i in range(5):
        for hf in range(2):
            r.append((f"ds_read_b64_tr_b16 {ar(base + 8 + i*4 + 2*hf, 2)}, v{V_CA[i&1]} offset:{i*32 + (32*s_ + 4*hf)*320}", f"w{j}s{s_}"))
    return r
def w_mf(j, s_):
    hs, di = divmod(j, 3)
    base = A_SET[s_]; accb = ACC2[hs & 1]; r = []
    for i in range(5):
        for a in range(2):
            acc = accb + (a*5 + i)*4
            cin = "0" if (di == 0 and s_ == 0) else vr(acc, 4)
            r.append(f"v_mfma_f32_16x16x32_bf16 {vr(acc,4)}, {ar(base + a*4, 4)}, {ar(base + 8 + i*4, 4)}, {cin}" if not NOMFMA else "s_nop 0")
    return r
def pack_ops(hs):
    ops = []
    accb = ACC2[hs & 1]
    for i in range(5):
        for a in range(2):
            acc = accb + (a*5 + i)*4
            for pr in range(2):
                ops.append(f"v_cvt_pk_bf16_f32 v{T[2 + a*2 + pr + 4*(i&1)]}, v{acc+2*pr}, v{acc+2*pr+1}")
        for k in range(4):
            ops.append(f"v_accvgpr_write_b32 a{A_VW + (hs*5+i)*4 + k}, v{T[2+k+4*(i&1)]}")
    return ops
def interleave2(mf, rd, fill):
    rd = list(rd); n = len(mf)
    plan = [0]*n
    span = max(1, int(n*0.7)); left = len(rd)
    for idx in range(left): plan[min(n-1, idx*span//left)] += 1
    for k in range(n):
        e(mf[k])
        for _ in range(plan[k]):
            t, tag = rd.pop(0); C.ds(t, tag)
        for _ in range(2):
            if fill: e(fill.pop(0))

w_addr(0)
for t, tag in w_rd(0, 0) + w_rd(0, 1): C.ds(t, tag)
S = [SACC + i for i in range(16)]
e("s_nop 4")
e(f"v_max3_f32 v{T[2]}, v{S[0]}, v{S[1]}, v{S[2]}")
for i in range(3, 15, 2):
    e(f"v_max3_f32 v{T[2]}, v{T[2]}, v{S[i]}, v{S[i+1]}")
e(f"v_max_f32 v{T[2]}, v{T[2]}, v{S[15]}")
def xreduce(op, r, t):
    for sw in ("v_permlane16_swap_b32", "v_permlane32_swap_b32"):
        e(f"v_mov_b32 v{t}, v{r}")
        e("s_nop 1")
        e(f"{sw} v{r}, v{t}")
        e("s_nop 1")
        e(f"{op} v{r}, v{r}, v{t}")
xreduce("v_max_f32", T[2], T[3])
e(f"s_mov_b32 s{S_C}, {f2u(SCALE_LOG2E):#x}")
e(f"v_mul_f32 v{T[2]}, s{S_C}, v{T[2]}")
for i in range(16):
    e(f"v_fma_f32 v{S[i]}, v{S[i]}, s{S_C}, -v{T[2]}")
for i in range(16):
    e(f"v_exp_f32 v{S[i]}, v{S[i]}")
e("s_nop 0")
e(f"v_add_f32 v{T[4]}, v{S[0]}, v{S[1]}")
for i in range(2, 16):
    e(f"v_add_f32 v{T[4]}, v{T[4]}, v{S[i]}")
xreduce("v_add_f32", T[4], T[3])
e(f"v_rcp_f32 v{T[4]}, v{T[4]}")
e("s_nop 0")
for i in range(16):
    e(f"v_mul_f32 v{S[i]}, v{S[i]}, v{T[4]}")
for s_ in range(2):
    for half in range(2):
        kt = 2*s_ + half
        for pr in range(2):
            d = PF + s_*4 + half*2 + pr
            e(f"v_cvt_pk_bf16_f32 v{d}, v{S[kt*4+2*pr]}, v{S[kt*4+2*pr+1]}")
e(f"s_add_u32 s62, s{S_PB}, s{S_W2048}")
for s_ in range(2):
    e(f"buffer_store_dwordx4 {vr(PF+4*s_,4)}, v{V_L16}, {srd(SRD_WS)}, s62 offen offset:{s_*1024} sc1")
C.stamp("Ppub")
def flag_store(dw_off_bytes):
    e("s_waitcnt vmcnt(0)")
    e(f"s_lshl_b32 s62, s{S_WL}, 2")
    e(f"s_add_u32 s62, s62, s{S_FLGO}")
    e(f"v_mov_b32 v{T[0]}, 0")
    e(f"v_mov_b32 v{T[1]}, 1")
    e("s_mov_b64 s[60:61], exec")
    e("s_mov_b64 exec, 1")
    e(f"buffer_store_dword v{T[1]}, v{T[0]}, {srd(SRD_WS)}, s62 offen offset:{dw_off_bytes} sc1")
    e("s_mov_b64 exec, s[60:61]")
C.wait_lg(f"w0s0")
for m in w_mf(0, 0): e(m)
C.wait_lg_all()
fill = []
for j in range(1, 12):
    C.barrier(f"V{j}")
    w_addr(j)
    interleave2(w_mf(j-1, 1), w_rd(j, 0), fill)
    hs_prev, di_prev = divmod(j-1, 3)
    C.wait_lg(f"w{j}s0")
    if j == 1: flag_store(0)
    if di_prev == 2:
        assert not fill
        fill = ["s_nop 1", "s_nop 1"]*2 + pack_ops(hs_prev)
    interleave2(w_mf(j, 0), w_rd(j, 1), fill)
    C.wait_lg_all()
C.barrier("V12")
interleave2(w_mf(11, 1), [], fill)
assert not fill
e("s_nop 7")
for op in pack_ops(3): e(op)
C.stamp("VWdone")
def p_reads(hs):
    for mt in range(4):
        C.ds(f"ds_read_b128 {ar(A_PF[hs&1] + mt*4, 4)}, v{V_PR} offset:{hs*8192 + mt*2048}", f"p{hs}")
p_reads(0); p_reads(1)
for hs in range(4):
    C.wait_lg(f"p{hs}")
    for i in range(5):
        for mt in range(4):
            acc = OACC + (i*4 + mt)*4
            cin = "0" if hs == 0 else vr(acc, 4)
            e(f"v_mfma_f32_16x16x32_bf16 {vr(acc,4)}, {ar(A_VW + (hs*5+i)*4, 4)}, {ar(A_PF[hs&1] + mt*4, 4)}, {cin}")
    if hs + 2 < 4: p_reads(hs + 2)
C.stamp("final")
e("s_nop 7")
e(f"s_mul_i32 s62, s{S_WL}, 10240")
e(f"v_add_u32 v{T[0]}, s62, v{V_L16}")
e(f"s_xor_b32 s63, s{S_WL}, 2")
e(f"s_mul_i32 s63, s63, 10240")
e(f"v_add_u32 v{T[1]}, s63, v{V_L16}")
e(f"s_add_u32 s{S_T2}, s{S_PARTW}, 4096")
lk1 = C.newlabel(); lkd = C.newlabel()
e(f"s_cmp_ge_u32 s{S_WL}, 2")
e(f"s_cbranch_scc1 {lk1}")
def pair(send_mts, keep_mts):
    n = 0
    for i in range(5):
        for mt in send_mts:
            e(f"ds_write_b128 v{T[0]}, {vr(OACC + (i*4+mt)*4, 4)} offset:{RBUF + n*1024}"); n += 1
    e("s_waitcnt lgkmcnt(0)")
    e("s_barrier")
    n = 0
    for i in range(5):
        for k in range(2):
            e(f"ds_read_b128 {vr(OACC + (i*4+send_mts[k])*4, 4)}, v{T[1]} offset:{RBUF + n*1024}"); n += 1
    e("s_waitcnt lgkmcnt(0)")
    for k in range(2):
        for i in range(5):
            kp = OACC + (i*4+keep_mts[k])*4
            rc = OACC + (i*4+send_mts[k])*4
            for r in range(4):
                e(f"v_add_f32 v{kp+r}, v{kp+r}, v{rc+r}")
            e(f"v_cvt_pk_bf16_f32 v{kp}, v{kp}, v{kp+1}")
            e(f"v_cvt_pk_bf16_f32 v{kp+1}, v{kp+2}, v{kp+3}")
            tp = k*5 + i
            if tp*512 < 4096:
                e(f"buffer_store_dwordx2 {vr(kp,2)}, v{V_L8}, {srd(SRD_WS)}, s{S_PARTW} offen offset:{tp*512} sc1")
            else:
                e(f"buffer_store_dwordx2 {vr(kp,2)}, v{V_L8}, {srd(SRD_WS)}, s{S_T2} offen offset:{tp*512-4096} sc1")
pair([2, 3], [0, 1])
e(f"s_branch {lkd}")
C.label(lk1)
pair([0, 1], [2, 3])
C.label(lkd)
C.nbar += 1
C.stamp("partpub")
flag_store(16)
C.stamp("flagpub")
gather(C, S_WL)
C.stamp("done")
prof_end(C, 0)
if PROF == 9:
    e("s_waitcnt vmcnt(0)")
    e("s_memrealtime s[92:93]")
    e("s_waitcnt lgkmcnt(0)")
    e("s_not_b32 s90, s90")
    e("v_mov_b32 v4, 4"); e("v_mov_b32 v5, s92")
    e("v_mov_b32 v6, 8"); e("v_mov_b32 v7, s90")
    e("s_mov_b64 exec, 1")
    e(f"buffer_atomic_umax v5, v4, {srd(SRD_DBG)}, 0 offen sc1")
    e(f"buffer_atomic_umax v7, v6, {srd(SRD_DBG)}, 0 offen sc1")
    e("s_waitcnt vmcnt(0)")
e("s_endpgm")

def gen_loader(L, var):
    global e
    e = L.e
    def div_small(dst, src, d):
        magic = {24: 2731, 20: 3277}[d]
        e(f"v_mul_u32_u24 v{dst}, {magic}, v{src}")
        e(f"v_lshrrev_b32 v{dst}, 16, v{dst}")
    e("v_lshlrev_b32 v3, 4, v9")
    e(f"s_mul_i32 s{S_W6144}, s{S_WL}, 6144")
    e(f"s_mul_i32 s{S_W5120}, s{S_WL}, 5120")
    for j in range(6):
        e(f"v_add_u32 v4, {64*j}, v{V_LANE}")
        div_small(5, 4, 24)
        e("v_mul_u32_u24 v6, 24, v5")
        e("v_sub_u32 v6, v4, v6")
        e("v_bfe_u32 v7, v5, 1, 1")
        e("v_bfe_u32 v8, v5, 3, 1")
        e("v_lshl_add_u32 v7, v8, 1, v7")
        e("v_lshlrev_b32 v7, 1, v7")
        e("v_xor_b32 v6, v6, v7")
        e("v_add_u32 v5, v5, v3")
        e("v_mul_u32_u24 v5, 12288, v5")
        e(f"v_lshl_add_u32 v{V_WQ[j]}, v6, 4, v5")
    for j in range(2):
        e(f"v_add_u32 v4, {64*j}, v{V_LANE}")
        e("v_lshrrev_b32 v5, 3, v4")
        e("v_and_b32 v6, 7, v4")
        e("v_bfe_u32 v7, v5, 1, 3")
        e("v_xor_b32 v6, v6, v7")
        e("v_add_u32 v5, v5, v3")
        e("v_mul_u32_u24 v7, 1280, v5")
        e(f"v_lshl_add_u32 v{V_X[j]}, v6, 4, v7")
        e("v_mul_u32_u24 v7, 384, v5")
        e(f"v_lshl_add_u32 v{V_V[j]}, v6, 4, v7")
    e(f"s_mul_i32 s62, s{S_Q}, 160")
    e(f"s_mul_i32 s63, s{S_WL}, 40")
    e("s_add_u32 s62, s62, s63")
    e(f"v_min_u32 v4, 39, v{V_LANE}")
    e("v_add_u32 v4, s62, v4")
    e(f"v_lshlrev_b32 v{T[5]}, 7, v4")
    e(f"s_mul_i32 s62, s{S_B}, 48")
    e(f"s_mul_i32 s63, s{S_WL}, 12")
    e("s_add_u32 s62, s62, s63")
    e(f"v_min_u32 v4, 11, v{V_LANE}")
    e("v_add_u32 v4, s62, v4")
    e("v_mul_u32_u24 v5, 21846, v4")
    e("v_lshrrev_b32 v5, 16, v5")
    e("v_mul_u32_u24 v6, 3, v5")
    e("v_sub_u32 v6, v4, v6")
    e("v_add_u32 v5, 512, v5")
    e("v_mul_u32_u24 v5, 12288, v5")
    e(f"v_lshl_add_u32 v{T[6]}, v6, 7, v5")
    e("s_waitcnt lgkmcnt(0)")
    L.stamp("kernarg")
    e(f"s_mul_i32 s62, s{S_B}, 81920")
    mk_srd(L, SRD_X, S_KA+0, 62, 81920)
    e(f"s_mul_i32 s62, s{S_H}, 384")
    mk_srd(L, SRD_WQ, S_KA+6, 62, 640*12288 - 31*384)
    e(f"s_mov_b32 s{S_KC}, s{S_B}")
    def dma(vaddr, srdreg, soff, m0s, m0const, tag):
        e(f"s_add_u32 m0, s{m0s}, {m0const}")
        e("s_nop 0")
        so = f"s{soff}" if soff is not None else "0"
        L.vmem(f"buffer_load_dwordx4 v{vaddr}, {srd(srdreg)}, {so} offen {NT}lds", tag)
    def load_L(c):
        sb = LSLOT[c] * SLOT
        e(f"s_mul_i32 s{S_OWQ}, s{S_KC}, {64*12288}")
        e(f"s_lshl_b32 s{S_OX}, s{S_KC}, 7")
        for j in range(6): dma(V_WQ[j], SRD_WQ, S_OWQ, S_W6144, sb + WQ_IMG + j*1024, f"L{c}")
        for j in range(2): dma(V_X[j], SRD_X, S_OX, S_W2048, sb + X_IMG + j*1024, f"L{c}")
        e(f"s_add_u32 s{S_KC}, s{S_KC}, 1")
        e(f"s_cmp_ge_u32 s{S_KC}, 10")
        e(f"s_cselect_b32 s{S_KC}, 0, s{S_KC}")
    load_L(0)
    if int(os.environ.get("PRE", "1")):
        L.vmem(f"buffer_load_dword v{V_PRE[0]}, v{T[5]}, {srd(SRD_X)}, 0 offen {NT}", "pre")
        L.vmem(f"buffer_load_dword v{V_PRE[1]}, v{T[6]}, {srd(SRD_WQ)}, 0 offen {NT}", "pre")
    load_L(1)
    e(f"s_lshl_b32 s62, s{S_B}, 5")
    e(f"s_add_u32 s63, s62, s{S_H}")
    e(f"s_mul_i32 s63, s63, 24576")
    mk_srd(L, SRD_K, S_KA+2, 63, 24576)
    e(f"s_lshl_b32 s63, s{S_G}, 2")
    e(f"s_add_u32 s63, s63, s62")
    e(f"s_mul_i32 s63, s63, 24576")
    mk_srd(L, SRD_V, S_KA+4, 63, 4*24576)
    e(f"s_mul_i32 s62, s{S_G}, {768*1280}")
    e(f"s_mul_i32 s63, s{S_Q}, 320")
    e(f"s_add_u32 s62, s62, s63")
    mk_srd(L, SRD_WO, S_KA+8, 62, 768*1280 - 960)
    common_scalars(L)
    common_scalars2(L)
    e(f"s_lshr_b32 s62, s{S_B}, 1")
    e(f"s_add_u32 s62, s62, s{S_Q}")
    e(f"s_and_b32 s{S_RH}, s62, 3")
    e(f"s_and_b32 s62, s{S_B}, 1")
    e(f"s_lshl_b32 s{S_RD}, s62, 1")
    lb = L.newlabel()
    e(f"s_cmp_lg_u32 s{S_WL}, 0")
    e(f"s_cbranch_scc1 {lb}")
    e(f"v_lshlrev_b32 v4, 2, v{V_LANE}")
    e("v_mov_b32 v5, 0")
    e("s_mov_b64 s[62:63], exec")
    e("s_mov_b64 exec, 0xff")
    L.vmem(f"buffer_store_dword v5, v4, {srd(SRD_WS)}, s{S_FLGO} offen sc1", "clr", "st")
    e("s_mov_b64 exec, s[62:63]")
    L.label(lb)
    for j in range(6):
        e(f"v_add_u32 v4, {64*j}, v{V_LANE}")
        div_small(5, 4, 24)
        e("v_mul_u32_u24 v6, 24, v5")
        e("v_sub_u32 v6, v4, v6")
        e("v_bfe_u32 v7, v5, 1, 3")
        e("v_xor_b32 v6, v6, v7")
        e("v_add_u32 v5, v5, v3")
        e("v_mul_u32_u24 v5, 384, v5")
        e(f"v_lshl_add_u32 v{V_K[j]}, v6, 4, v5")
    for j in range(5):
        e(f"v_add_u32 v4, {64*j}, v{V_LANE}")
        div_small(5, 4, 20)
        e("v_mul_u32_u24 v6, 20, v5")
        e("v_sub_u32 v6, v4, v6")
        e("v_bfe_u32 v7, v5, 3, 1")
        e("v_lshlrev_b32 v7, 1, v7")
        e("v_xor_b32 v6, v6, v7")
        e("v_add_u32 v5, v5, v3")
        e("v_mul_u32_u24 v5, 1280, v5")
        e(f"v_lshl_add_u32 v{V_WO[j]}, v6, 4, v5")
    def w_offsets(j):
        hs, di = divmod(j, 3)
        e(f"s_add_u32 s62, s{S_RH}, {hs}")
        e("s_and_b32 s62, s62, 3")
        e(f"s_add_u32 s63, s{S_RD}, {di}")
        e("s_cmp_ge_u32 s63, 3")
        e(f"s_cselect_b32 s{S_T2}, 3, 0")
        e(f"s_sub_u32 s63, s63, s{S_T2}")
        e(f"s_mul_i32 s{S_OWO}, s62, {192*1280}")
        e(f"s_mul_i32 s{S_T2}, s63, {64*1280}")
        e(f"s_add_u32 s{S_OWO}, s{S_OWO}, s{S_T2}")
        e(f"s_mul_i32 s{S_OV}, s62, 24576")
        e(f"s_lshl_b32 s{S_T2}, s63, 7")
        e(f"s_add_u32 s{S_OV}, s{S_OV}, s{S_T2}")
    def load_W(j):
        sb = WSLOT[j] * SLOT
        w_offsets(j)
        for jj in range(5): dma(V_WO[jj], SRD_WO, S_OWO, S_W5120, sb + WO_IMG + jj*1024, f"W{j}")
        for jj in range(2): dma(V_V[jj], SRD_V, S_OV, S_W2048, sb + V_IMG + jj*1024, f"W{j}")
    def pre_V(j):
        w_offsets(j)
        e(f"v_and_b32 v4, 15, v{V_LANE}")
        e("v_add_u32 v4, v4, v3")
        e("v_mul_u32_u24 v4, 384, v4")
        L.vmem(f"buffer_load_dword v{V_PRE[2]}, v4, {srd(SRD_V)}, s{S_OV} offen {NT}", "pre")
    def load_K():
        for j in range(6): dma(V_K[j], SRD_K, None, S_W6144, KSLOT*SLOT + j*1024, "K")
    def p_loads():
        e(f"s_lshl_b32 s62, s{S_B}, 5")
        e(f"s_lshl_b32 s63, s{S_G}, 2")
        e(f"s_add_u32 s{S_T3}, s62, s63")
        e(f"s_add_u32 s62, s{S_RH}, s{S_WL}")
        e("s_and_b32 s62, s62, 3")
        e(f"s_add_u32 s62, s62, s{S_T3}")
        e("s_lshl_b32 s62, s62, 13")
        for f in range(8):
            if f == 4: e("s_add_u32 s62, s62, 4096")
            L.vmem(f"buffer_load_dwordx4 {vr(V_PD + f*4, 4)}, v{V_L16}, {srd(SRD_WS)}, s62 offen offset:{(f%4)*1024} sc1", "pld")
    names = [f"B{i}" for i in range(13)] + [f"V{j}" for j in range(1, 13)]
    for tau in range(25):
        if tau <= 9: L.wait_vm(f"L{tau}")
        if tau == 11: L.wait_vm("K")
        if 12 <= tau <= 23: L.wait_vm(f"W{tau-12}")
        if tau == 24:
            L.wait_vm("pld")
            e(f"s_lshl_b32 s62, s{S_WL}, 13")
            e(f"s_add_u32 s62, s62, {PIMG}")
            e(f"v_add_u32 v{T[2]}, s62, v{V_L16}")
            for f in range(8):
                L.ds(f"ds_write_b128 v{T[2]}, {vr(V_PD + f*4, 4)} offset:{f*1024}", "pw")
            L.wait_lg_all()
        L.barrier(names[tau])
        if 0 <= tau <= 7: load_L(tau + 2)
        if tau == KPOS: load_K()
        if tau == W0POS[var]: load_W(0)
        if tau == W1POS[var]:
            load_W(1); pre_V(2)
        if tau == W2POS: load_W(2)
        if tau == 12: load_W(3); load_W(4)
        if 13 <= tau <= 19: load_W(tau - 8)
        if tau == 3:
            lb = L.newlabel()
            e(f"s_cmp_lg_u32 s{S_WL}, 0")
            e(f"s_cbranch_scc1 {lb}")
            e(f"s_lshl_b32 s62, s{S_B}, 5")
            e(f"v_mov_b32 v4, s62")
            e("v_mov_b32 v5, 1")
            e("s_mov_b64 s[62:63], exec")
            e("s_mov_b64 exec, 1")
            L.e("s_waitcnt vmcnt(%d)" % sum(1 for (t,k) in L.vm[[i for i,(t,k) in enumerate(L.vm) if t=="clr"][0]+1:] if k=="ld"))
            L.vmem(f"buffer_atomic_add v5, v4, {srd(SRD_DBG)}, 0 offen sc1", "arr", "st")
            e("s_mov_b64 exec, s[62:63]")
            L.label(lb)
        if tau == 15:
            e(f"s_lshl_b32 s62, s{S_B}, 5")
            e(f"v_mov_b32 v{T[2]}, s62")
            L.vmem(f"buffer_load_dword v{T[1]}, v{T[2]}, {srd(SRD_DBG)}, 0 offen sc1", "cnt")
        if tau == 17:
            L.wait_vm("cnt")
            l0 = L.newlabel(); l1 = L.newlabel()
            e(f"s_mov_b32 s{S_CNT}, 0")
            L.label(l0)
            e(f"v_readfirstlane_b32 s62, v{T[1]}")
            e("s_cmp_ge_u32 s62, 32")
            e(f"s_cbranch_scc1 {l1}")
            e(f"s_add_u32 s{S_CNT}, s{S_CNT}, 1")
            e(f"s_cmp_gt_u32 s{S_CNT}, 200000")
            e(f"s_cbranch_scc1 {l1}")
            e("s_sleep 2")
            e(f"buffer_load_dword v{T[1]}, v{T[2]}, {srd(SRD_DBG)}, 0 offen sc1")
            e("s_waitcnt vmcnt(0)")
            e(f"s_branch {l0}")
            L.label(l1)
            e(f"s_add_u32 s62, s{S_RH}, s{S_WL}")
            e("s_and_b32 s62, s62, 3")
            e(f"s_lshl_b32 s62, s62, 7")
            e(f"s_add_u32 s{S_KC}, s62, s{S_FLGP}")
            e(f"v_lshlrev_b32 v{T[4]}, 2, v{V_LANE}")
            L.vmem(f"buffer_load_dword v{T[3]}, v{T[4]}, {srd(SRD_WS)}, s{S_KC} offen sc1", "pfl")
        if tau == 20:
            L.wait_vm("pfl")
            def issue(): e(f"buffer_load_dword v{T[3]}, v{T[4]}, {srd(SRD_WS)}, s{S_KC} offen sc1")
            poll_loop(L, issue, T[3], "0xf", first_issued=True)
            p_loads()
    L.stamp("pimg")
    L.barrier("R")
    lb = L.newlabel()
    e(f"s_cmp_lg_u32 s{S_W}, 4")
    e(f"s_cbranch_scc1 {lb}")
    e(f"s_mov_b32 s{S_KC}, 4")
    gather(L, S_KC)
    L.label(lb)
    L.stamp("done")
    prof_end(L, 4)

Ls = []
D = G(0); D.label("L_loader")
for v in range(1, NVAR):
    D.e(f"s_and_b32 s62, s{S_B}, {NVAR-1}")
    D.e(f"s_cmp_eq_u32 s62, {v}")
    D.e(f"s_cbranch_scc1 L_var{v}")
for v in range(NVAR):
    H = G(2)
    if v: H.label(f"L_var{v}")
    if PROF == 2: H.live.append((0, 64)); H.names.append("start"); H.nstamp = 1
    gen_loader(H, v)
    if v == NVAR-1: H.label("L_end")
    H.e("s_endpgm")
    assert C.nbar == H.nbar, (C.nbar, H.nbar)
    Ls.append(H)

out += P.o + C.o + D.o
for H in Ls: out += H.o
out += ['.section .rodata,"a"', ".p2align 6", f".amdhsa_kernel {NAME}", "  .amdhsa_next_free_vgpr 256", "  .amdhsa_next_free_sgpr 102",
        "  .amdhsa_accum_offset 120", "  .amdhsa_group_segment_fixed_size 0", "  .amdhsa_kernarg_size 64", "  .amdhsa_user_sgpr_count 2",
        "  .amdhsa_user_sgpr_kernarg_segment_ptr 1", "  .amdhsa_system_sgpr_workgroup_id_x 1", ".end_amdhsa_kernel"]
print("\n".join(out))
if PROF in (1, 2): open("names%d.txt" % PROF, "w").write(",".join({1: C, 2: Ls[0]}[PROF].names))
```

```python
import sys, os, math, struct

PROF = int(os.environ.get("PROF", "0"))
NOMFMA = int(os.environ.get("NOMFMA", "0"))
NT = "nt " if int(os.environ.get("NT", "1")) else ""
W2POS = int(os.environ.get("W2POS", "11"))
HOTLEAD = int(os.environ.get("HOTLEAD", "2"))

def f2u(f): return struct.unpack("<I", struct.pack("<f", f))[0]

class G:
    lab = 0
    def __init__(self, role):
        self.role = role
        self.o = []; self.vm = []; self.lg = []
        self.nstamp = 0; self.live = []; self.names = []; self.nbar = 0
    def e(self, s): self.o.append("    " + s)
    def label(self, s): self.o.append(s + ":")
    def newlabel(self, p="L"):
        G.lab += 1
        return f"{p}_{G.lab}"
    def vmem(self, s, tag, kind="ld"):
        self.e(s); self.vm.append((tag, kind))
    def wait_vm(self, tag):
        idxs = [i for i, (t, k) in enumerate(self.vm) if t == tag]
        if not idxs: return
        idx = max(idxs)
        n = sum(1 for (t, k) in self.vm[idx+1:] if k == "ld")
        self.e(f"s_waitcnt vmcnt({min(n, 63)})")
    def ds(self, s, tag):
        self.e(s); self.lg.append(tag)
    def wait_lg(self, tag):
        idx = max(i for i, t in enumerate(self.lg) if t == tag)
        n = len(self.lg) - 1 - idx
        self.e(f"s_waitcnt lgkmcnt({min(n, 15)})")
    def wait_lg_all(self):
        self.e("s_waitcnt lgkmcnt(0)")
    def barrier(self, name=""):
        self.e("s_barrier"); self.nbar += 1
        if name: self.stamp(name)
    def stamp(self, name=""):
        if PROF == self.role:
            r = 64 + 2*(self.nstamp % 8)
            self.flush_stamps(keep=7)
            self.e(f"s_memtime s[{r}:{r+1}]")
            self.live.append((self.nstamp, r))
            self.names.append(name or str(self.nstamp))
            self.nstamp += 1
    def flush_stamps(self, keep=0):
        while len(self.live) > keep:
            n, r = self.live.pop(0)
            self.e(f"v_writelane_b32 v{V_STAMP}, s{r}, {n}")

SLOT = 32768
WQ_IMG = 0; X_IMG = 24576
WO_IMG = 0; V_IMG = 20480
PREG = 0
PART = 2 << 20
FLG = 8 << 20
STAMPS = 16 << 20
WS_BYTES = 268435456
SCALE_LOG2E = (192 ** -0.5) * math.log2(math.e)

S_W = 3; S_B = 4; S_G = 5; S_Q = 6; S_H = 7
SRD_X = 8; SRD_WQ = 12; SRD_K = 16; SRD_V = 20; SRD_WO = 24; SRD_WS = 28; SRD_OUT = 32; SRD_DBG = 36
S_KA = 40
S_C = 44; S_PB = 45; S_T2 = 46; S_T3 = 47; S_CNT = 48; S_PARTW = 50; S_PARTR = 51; S_OUTO = 52; S_FLGO = 53
S_WL = 98; S_H1024 = 99; S_W2048 = 100
S_FLGR = 42; S_FLGP = 43
def srd(r): return f"s[{r}:{r+3}]"
def vr(b, n): return f"v[{b}:{b+n-1}]"
def ar(b, n): return f"a[{b}:{b+n-1}]"

V_LANE = 1; V_L16 = 10; V_L8 = 11; V_M = 12; V_G4 = 13
T = list(range(14, 24))
V_STAMP = 39
V_WQ = list(range(24, 30)); V_X = [30, 31]; V_K = list(range(32, 38)); V_WO = list(range(40, 45)); V_V = [45, 46]
V_PD = 48
V_PRE = [80, 81, 82, 83, 84, 85]
S_KC = 56; S_OWQ = 57; S_OX = 58; S_W6144 = 59; S_W5120 = 60; S_RH = 61; S_RD = 41; S_OWO = 40; S_OV = 101
V_A = [24, 25, 26]; V_B = [27, 28]; V_CA = [29, 30, 31]; V_CB = [32, 33]; V_QW = [34, 35, 36]; V_KR = [37, 38]
V_VR = [2, 3]; V_W = [4, 5]; V_PR = 6
ACC1 = 40; SACC = 40; PF = 56; ACC2 = [40, 80]; OACC = 40
A_SET = [0, 28]; A_KF = 0; A_QF = 96; A_VW = 56; A_PF = [0, 16]
GR = 48

LSLOT = [c % 3 for c in range(10)]
KSLOT = 1; QSLOT = 0
WSLOT = [3, 4, 2, 0, 1, 3, 4, 2, 0, 1, 3, 4]
PIMG = 2 * SLOT
RBUF = 0
NVAR = int(os.environ.get("NVAR", "4"))
W0POS = [int(x) for x in os.environ.get("W0POS", "1,2,3,4").split(",")]
W1POS = [int(x) for x in os.environ.get("W1POS", "5,6,7,8").split(",")]
KPOS = int(os.environ.get("KPOS", "8"))

NAME = "standalone__mha_block_cached__near_ridge_kernel"
hdr = open("standalone__mha_block_cached__near_ridge.s.ref").read().split("\n")
head = [l for l in hdr if l.startswith(";") and "@launch" not in l and "Override" not in l and "grid=ceil" not in l]
out = head + [f"; @launch grid=(256,1,1) block=(512,1,1) lds=163840",
 '.amdgcn_target "amdgcn-amd-amdhsa--gfx950"', ".text", f".globl {NAME}", ".p2align 8", f".type {NAME},@function", f"{NAME}:"]

P = G(0); e = P.e
e("s_cmp_ge_u32 s2, 256")
e("s_cbranch_scc1 L_end")
if PROF in (1, 2): e("s_memtime s[64:65]")
if PROF == 9: e("s_memrealtime s[90:91]"); e("s_memtime s[88:89]")
e(f"s_load_dwordx16 s[{S_KA}:{S_KA+15}], s[0:1], 0")
e(f"s_and_b32 s{S_G}, s2, 7")
e("s_lshr_b32 s62, s2, 3")
e(f"s_and_b32 s{S_Q}, s62, 3")
e(f"s_lshr_b32 s{S_B}, s2, 5")
e(f"s_lshl_b32 s{S_H}, s{S_G}, 2")
e(f"s_add_u32 s{S_H}, s{S_H}, s{S_Q}")
e(f"v_lshrrev_b32 v2, 6, v0")
e(f"v_and_b32 v{V_LANE}, 63, v0")
e(f"v_readfirstlane_b32 s{S_W}, v2")
e(f"v_and_b32 v{V_M}, 15, v{V_LANE}")
e(f"v_lshrrev_b32 v{V_G4}, 4, v{V_LANE}")
e(f"v_lshlrev_b32 v{V_L16}, 4, v{V_LANE}")
e(f"v_lshlrev_b32 v{V_L8}, 3, v{V_LANE}")
e(f"s_and_b32 s{S_WL}, s{S_W}, 3")
e(f"v_and_b32 v9, 3, v2")
e(f"s_lshl_b32 s{S_H1024}, s{S_WL}, 10")
e(f"s_lshl_b32 s{S_W2048}, s{S_WL}, 11")
e(f"s_cmp_ge_u32 s{S_W}, 4")
e("s_cbranch_scc1 L_loader")

def mk_srd(g, r, plo, off_sreg, nbytes):
    e = g.e
    if off_sreg is None:
        e(f"s_mov_b32 s{r}, s{plo}")
        e(f"s_mov_b32 s{r+1}, s{plo+1}")
    else:
        e(f"s_add_u32 s{r}, s{plo}, s{off_sreg}")
        e(f"s_addc_u32 s{r+1}, s{plo+1}, 0")
    e(f"s_mov_b32 s{r+2}, {nbytes}")
    e(f"s_mov_b32 s{r+3}, 0x00020000")

def common_scalars(g):
    mk_srd(g, SRD_OUT, S_KA+10, None, 8*64*640*2)
    mk_srd(g, SRD_DBG, S_KA+12, None, 256)
    mk_srd(g, SRD_WS, S_KA+14, None, WS_BYTES)

def common_scalars2(g):
    e = g.e
    e(f"s_lshl_b32 s62, s{S_B}, 5")
    e(f"s_add_u32 s62, s62, s{S_H}")
    e(f"s_lshl_b32 s{S_PB}, s62, 13")
    e(f"s_lshl_b32 s63, s62, 7")
    e(f"s_add_u32 s{S_FLGO}, s63, {FLG}")
    e(f"s_lshl_b32 s62, s{S_B}, 5")
    e(f"s_lshl_b32 s63, s{S_G}, 2")
    e(f"s_add_u32 s63, s63, s62")
    e(f"s_lshl_b32 s63, s63, 7")
    e(f"s_add_u32 s{S_FLGP}, s63, {FLG}")
    e(f"s_add_u32 s63, s62, s{S_Q}")
    e(f"s_lshl_b32 s63, s63, 7")
    e(f"s_add_u32 s{S_FLGR}, s63, {FLG}")
    e(f"s_lshl_b32 s62, s{S_B}, 2")
    e(f"s_add_u32 s62, s62, s{S_Q}")
    e(f"s_lshl_b32 s63, s62, 3")
    e(f"s_add_u32 s63, s63, s{S_G}")
    e(f"s_mul_i32 s63, s63, 20480")
    e(f"s_add_u32 s63, s63, {PART}")
    e(f"s_mul_i32 s{S_PARTW}, s{S_WL}, 5120")
    e(f"s_add_u32 s{S_PARTW}, s{S_PARTW}, s63")
    e(f"s_mul_i32 s62, s62, {8*20480}")
    e(f"s_mul_i32 s63, s{S_G}, 2560")
    e(f"s_add_u32 s62, s62, s63")
    e(f"s_add_u32 s{S_PARTR}, s62, {PART}")
    e(f"s_lshr_b32 s62, s{S_G}, 2")
    e(f"s_lshl_b32 s62, s62, 1")
    e(f"s_and_b32 s63, s{S_G}, 1")
    e(f"s_add_u32 s62, s62, s63")
    e(f"s_lshl_b32 s62, s62, 4")
    e(f"s_lshl_b32 s63, s{S_B}, 6")
    e(f"s_add_u32 s62, s62, s63")
    e(f"s_mul_i32 s62, s62, 1280")
    e(f"s_mul_i32 s63, s{S_Q}, 320")
    e(f"s_add_u32 s62, s62, s63")
    e(f"s_lshr_b32 s63, s{S_G}, 1")
    e(f"s_and_b32 s63, s63, 1")
    e(f"s_mul_i32 s63, s63, 160")
    e(f"s_add_u32 s{S_OUTO}, s62, s63")

def poll_loop(g, issue_fn, datareg, lanes_mask, first_issued=False):
    e = g.e
    l0 = g.newlabel(); l1 = g.newlabel()
    e(f"s_mov_b32 s{S_CNT}, 0")
    e(f"s_mov_b64 s[62:63], exec")
    e(f"s_mov_b64 exec, {lanes_mask}")
    if not first_issued:
        issue_fn()
        e("s_waitcnt vmcnt(0)")
    g.label(l0)
    e(f"v_cmp_ne_u32 vcc, 1, v{datareg}")
    e(f"s_cbranch_vccz {l1}")
    e(f"s_add_u32 s{S_CNT}, s{S_CNT}, 1")
    e(f"s_cmp_gt_u32 s{S_CNT}, 200000")
    e(f"s_cbranch_scc1 {l1}")
    issue_fn()
    e("s_waitcnt vmcnt(0)")
    e(f"s_branch {l0}")
    g.label(l1)
    e(f"s_mov_b64 exec, s[62:63]")

def gather(g, tile_sreg):
    e = g.e
    e(f"v_mul_u32_u24 v{T[8]}, 1280, v{V_M}")
    e(f"v_lshl_add_u32 v{T[8]}, v{V_G4}, 3, v{T[8]}")
    e(f"v_lshlrev_b32 v{T[0]}, 9, v{V_LANE}")
    e(f"s_lshr_b32 s{S_T3}, s{S_G}, 1")
    e(f"s_lshl_b32 s{S_T3}, s{S_T3}, 2")
    e(f"s_add_u32 s{S_T3}, s{S_T3}, 16")
    e(f"s_add_u32 s{S_T3}, s{S_T3}, s{S_FLGR}")
    def issue(): e(f"buffer_load_dword v{T[1]}, v{T[0]}, {srd(SRD_WS)}, s{S_T3} offen sc1")
    poll_loop(g, issue, T[1], "0xff")
    e(f"s_lshl_b32 s62, s{tile_sreg}, 9")
    e(f"s_add_u32 s{S_T3}, s{S_PARTR}, s62")
    for src in range(8):
        r = GR + src*2
        e(f"s_add_u32 s62, s{S_T3}, {src*20480}")
        e(f"buffer_load_dwordx2 {vr(r,2)}, v{V_L8}, {srd(SRD_WS)}, s62 offen sc1")
    for src in range(8):
        r = GR + src*2
        e(f"s_waitcnt vmcnt({7-src})")
        for d in range(2):
            if src == 0:
                e(f"v_lshlrev_b32 v{T[2+2*d]}, 16, v{r+d}")
                e(f"v_and_b32 v{T[3+2*d]}, 0xffff0000, v{r+d}")
            else:
                e(f"v_lshlrev_b32 v{T[6]}, 16, v{r+d}")
                e(f"v_and_b32 v{T[7]}, 0xffff0000, v{r+d}")
                e(f"v_add_f32 v{T[2+2*d]}, v{T[2+2*d]}, v{T[6]}")
                e(f"v_add_f32 v{T[3+2*d]}, v{T[3+2*d]}, v{T[7]}")
    e(f"v_cvt_pk_bf16_f32 v{T[6]}, v{T[2]}, v{T[3]}")
    e(f"v_cvt_pk_bf16_f32 v{T[7]}, v{T[4]}, v{T[5]}")
    e(f"s_lshl_b32 s62, s{tile_sreg}, 5")
    e(f"s_add_u32 s62, s62, s{S_OUTO}")
    e(f"buffer_store_dwordx2 {vr(T[6],2)}, v{T[8]}, {srd(SRD_OUT)}, s62 offen")

def prof_end(g, who):
    e = g.e
    if PROF == g.role:
        e("s_memrealtime s[96:97]")
        e("s_waitcnt lgkmcnt(0) vmcnt(0)")
        lb = g.newlabel()
        e(f"s_cmp_lg_u32 s{S_W}, {who}")
        e(f"s_cbranch_scc1 {lb}")
        e("s_lshl_b32 s62, s2, 8")
        e(f"s_add_u32 s62, s62, {STAMPS}")
        g.flush_stamps(0)
        e(f"v_writelane_b32 v{V_STAMP}, s96, 63")
        e(f"v_lshlrev_b32 v4, 2, v{V_LANE}")
        e(f"buffer_store_dword v{V_STAMP}, v4, {srd(SRD_WS)}, s62 offen")
        g.label(lb)

C = G(1); e = C.e
if PROF == 1: C.live.append((0, 64)); C.names.append("start"); C.nstamp = 1
e(f"v_bfe_u32 v4, v{V_LANE}, 2, 2")
e(f"v_and_b32 v5, 3, v{V_LANE}")
e(f"v_lshl_add_u32 v6, v{V_G4}, 3, v4")
e("v_lshrrev_b32 v7, 1, v4")
e(f"v_and_b32 v8, 1, v{V_G4}")
e("v_lshl_add_u32 v7, v8, 1, v7")
e("v_mul_u32_u24 v8, 384, v6")
e("v_lshl_add_u32 v8, v5, 3, v8")
e(f"v_mul_u32_u24 v{T[0]}, 3, v9")
for i in range(3):
    e(f"v_add_u32 v{T[1]}, {i}, v{T[0]}")
    e(f"v_xor_b32 v{T[1]}, v{T[1]}, v7")
    e(f"v_lshl_add_u32 v{V_A[i]}, v{T[1]}, 5, v8")
e("v_mul_u32_u24 v8, 320, v6")
e("v_lshl_add_u32 v8, v5, 3, v8")
e(f"v_and_b32 v{T[2]}, 1, v9")
e(f"v_mul_u32_u24 v7, 160, v{T[2]}")
e("v_add_u32 v8, v8, v7")
e(f"v_and_b32 v7, 1, v{V_G4}")
e("v_lshlrev_b32 v7, 5, v7")
e(f"v_add_u32 v{T[3]}, v8, v7")
e(f"v_sub_u32 v{T[4]}, v8, v7")
e(f"v_cmp_eq_u32 vcc, 0, v{T[2]}")
e("s_nop 1")
e(f"v_cndmask_b32 v{T[5]}, v{T[4]}, v{T[3]}, vcc")
e(f"v_cndmask_b32 v{T[6]}, v{T[3]}, v{T[4]}, vcc")
e(f"v_bfe_u32 v7, v{V_M}, 1, 3")
for s_ in range(2):
    e(f"v_add_u32 v8, {4*s_}, v{V_G4}")
    e("v_xor_b32 v8, v8, v7")
    e("v_lshlrev_b32 v8, 4, v8")
    e(f"v_lshl_add_u32 v{T[1]}, v{V_M}, 7, v8")
    e(f"v_add_u32 v{V_B[s_]}, {X_IMG}, v{T[1]}")
    e("v_lshrrev_b32 v4, 1, v9")
    e("v_lshlrev_b32 v4, 12, v4")
    e(f"v_add_u32 v4, v4, v{T[1]}")
    e(f"v_add_u32 v{T[7+s_]}, {V_IMG}, v4")
    e(f"v_mul_u32_u24 v{T[1]}, 384, v{V_M}")
    e(f"v_add_u32 v{V_KR[s_]}, v{T[1]}, v8")
for i in range(3):
    e(f"v_add_u32 v4, {i}, v{T[0]}")
    e("v_lshlrev_b32 v4, 1, v4")
    e(f"v_lshrrev_b32 v5, 1, v{V_G4}")
    e("v_add_u32 v4, v4, v5")
    e("v_xor_b32 v4, v4, v7")
    e("v_lshlrev_b32 v4, 4, v4")
    e(f"v_and_b32 v5, 1, v{V_G4}")
    e("v_lshl_add_u32 v4, v5, 3, v4")
    e(f"v_mul_u32_u24 v5, 384, v{V_M}")
    e(f"v_add_u32 v{V_QW[i]}, v4, v5")
    e(f"v_add_u32 v{V_QW[i]}, {QSLOT*SLOT}, v{V_QW[i]}")
e("v_lshrrev_b32 v4, 1, v9")
e("v_lshlrev_b32 v4, 10, v4")
e(f"v_add_u32 v4, v4, v{V_L16}")
e(f"v_add_u32 v{V_PR}, {PIMG}, v4")
e(f"v_mov_b32 v{V_VR[0]}, v{T[7]}")
e(f"v_mov_b32 v{V_VR[1]}, v{T[8]}")
e(f"v_mov_b32 v{V_W[0]}, v{T[5]}")
e(f"v_mov_b32 v{V_W[1]}, v{T[6]}")
e("s_waitcnt lgkmcnt(0)")
C.stamp("kernarg")
common_scalars(C)
common_scalars2(C)

def interleave(mf, rd, per=None):
    rd = list(rd)
    n = len(mf)
    plan = [0]*n
    k = 0; left = len(rd)
    span = max(1, int(n*0.7))
    for idx in range(left):
        plan[min(n-1, idx*span//left)] += 1
    for k in range(n):
        e(mf[k])
        for _ in range(plan[k]):
            t, tag = rd.pop(0); C.ds(t, tag)
    assert not rd

def p1_rd(c, s_):
    base = A_SET[s_]; r = []
    for mt in range(4):
        r.append((f"ds_read_b128 {ar(base + 12 + mt*4, 4)}, v{V_CB[s_]} offset:{mt*2048}", f"c{c}s{s_}"))
    for i in range(3):
        for hf in range(2):
            r.append((f"ds_read_b64_tr_b16 {ar(base + i*4 + 2*hf, 2)}, v{V_CA[i]} offset:{12288*s_ + 1536*hf}", f"c{c}s{s_}"))
    return r
def p1_mf(c, s_):
    base = A_SET[s_]; r = []
    for i in range(3):
        for mt in range(4):
            acc = ACC1 + (i*4 + mt)*4
            cin = "0" if (c == 0 and s_ == 0) else vr(acc, 4)
            r.append(f"v_mfma_f32_16x16x32_bf16 {vr(acc,4)}, {ar(base + i*4,4)}, {ar(base + 12 + mt*4,4)}, {cin}" if not NOMFMA else "s_nop 0")
    return r

for c in range(10):
    sb = LSLOT[c] * SLOT
    C.barrier(f"B{c}")
    for i in range(3): e(f"v_add_u32 v{V_CA[i]}, {sb}, v{V_A[i]}")
    for s_ in range(2): e(f"v_add_u32 v{V_CB[s_]}, {sb}, v{V_B[s_]}")
    if c == 0:
        for t, tag in p1_rd(c, 0): C.ds(t, tag)
    else:
        interleave(p1_mf(c-1, 1), p1_rd(c, 0))
    C.wait_lg(f"c{c}s0")
    interleave(p1_mf(c, 0), p1_rd(c, 1))
    C.wait_lg_all()
C.barrier("B10")
for m in p1_mf(9, 1): e(m)
e("s_nop 7")
for i in range(3):
    for mt in range(4):
        acc = ACC1 + (i*4 + mt)*4
        t0 = T[2*((i*4+mt) % 4)]
        e(f"v_cvt_pk_bf16_f32 v{t0}, v{acc}, v{acc+1}")
        e(f"v_cvt_pk_bf16_f32 v{t0+1}, v{acc+2}, v{acc+3}")
        C.ds(f"ds_write_b64 v{V_QW[i]}, {vr(t0,2)} offset:{mt*6144}", "qw")
e(f"s_mul_i32 s62, s{S_WL}, {16*384}")
e(f"s_add_u32 s62, s62, {QSLOT*SLOT}")
for p in range(2):
    e(f"v_add_u32 v{V_CA[p]}, s62, v{V_KR[p]}")
    e(f"v_add_u32 v{V_CB[p]}, {KSLOT*SLOT}, v{V_KR[p]}")
C.wait_lg_all()
C.barrier("B11")
for s_ in range(6):
    C.ds(f"ds_read_b128 {ar(A_QF + 4*s_, 4)}, v{V_CA[s_&1]} offset:{(s_>>1)*128}", f"sk{s_}")
    for kt in range(4):
        C.ds(f"ds_read_b128 {ar(A_KF + (s_*4+kt)*4, 4)}, v{V_CB[s_&1]} offset:{kt*6144 + (s_>>1)*128}", f"sk{s_}")
for s_ in range(6):
    C.wait_lg(f"sk{s_}")
    for kt in range(4):
        acc = SACC + kt*4
        cin = "0" if s_ == 0 else vr(acc, 4)
        e(f"v_mfma_f32_16x16x32_bf16 {vr(acc,4)}, {ar(A_KF + (s_*4+kt)*4, 4)}, {ar(A_QF + 4*s_, 4)}, {cin}")
C.barrier("B12")

def w_addr(j):
    sb = WSLOT[j] * SLOT
    for s_ in range(2): e(f"v_add_u32 v{V_CB[s_]}, {sb}, v{V_VR[s_]}")
    for p in range(2): e(f"v_add_u32 v{V_CA[p]}, {sb}, v{V_W[p]}")
def w_rd(j, s_):
    base = A_SET[s_]; r = []
    for a in range(2):
        r.append((f"ds_read_b128 {ar(base + a*4, 4)}, v{V_CB[s_]} offset:{a*2048}", f"w{j}s{s_}"))
    for i in range(5):
        for hf in range(2):
            r.append((f"ds_read_b64_tr_b16 {ar(base + 8 + i*4 + 2*hf, 2)}, v{V_CA[i&1]} offset:{i*32 + (32*s_ + 4*hf)*320}", f"w{j}s{s_}"))
    return r
def w_mf(j, s_):
    hs, di = divmod(j, 3)
    base = A_SET[s_]; accb = ACC2[hs & 1]; r = []
    for i in range(5):
        for a in range(2):
            acc = accb + (a*5 + i)*4
            cin = "0" if (di == 0 and s_ == 0) else vr(acc, 4)
            r.append(f"v_mfma_f32_16x16x32_bf16 {vr(acc,4)}, {ar(base + a*4, 4)}, {ar(base + 8 + i*4, 4)}, {cin}" if not NOMFMA else "s_nop 0")
    return r
def pack_ops(hs):
    ops = []
    accb = ACC2[hs & 1]
    for i in range(5):
        for a in range(2):
            acc = accb + (a*5 + i)*4
            for pr in range(2):
                ops.append(f"v_cvt_pk_bf16_f32 v{T[2 + a*2 + pr + 4*(i&1)]}, v{acc+2*pr}, v{acc+2*pr+1}")
        for k in range(4):
            ops.append(f"v_accvgpr_write_b32 a{A_VW + (hs*5+i)*4 + k}, v{T[2+k+4*(i&1)]}")
    return ops
def interleave2(mf, rd, fill):
    rd = list(rd); n = len(mf)
    plan = [0]*n
    span = max(1, int(n*0.7)); left = len(rd)
    for idx in range(left): plan[min(n-1, idx*span//left)] += 1
    for k in range(n):
        e(mf[k])
        for _ in range(plan[k]):
            t, tag = rd.pop(0); C.ds(t, tag)
        for _ in range(2):
            if fill: e(fill.pop(0))

w_addr(0)
for t, tag in w_rd(0, 0) + w_rd(0, 1): C.ds(t, tag)
S = [SACC + i for i in range(16)]
e("s_nop 4")
e(f"v_max3_f32 v{T[2]}, v{S[0]}, v{S[1]}, v{S[2]}")
for i in range(3, 15, 2):
    e(f"v_max3_f32 v{T[2]}, v{T[2]}, v{S[i]}, v{S[i+1]}")
e(f"v_max_f32 v{T[2]}, v{T[2]}, v{S[15]}")
def xreduce(op, r, t):
    for sw in ("v_permlane16_swap_b32", "v_permlane32_swap_b32"):
        e(f"v_mov_b32 v{t}, v{r}")
        e("s_nop 1")
        e(f"{sw} v{r}, v{t}")
        e("s_nop 1")
        e(f"{op} v{r}, v{r}, v{t}")
xreduce("v_max_f32", T[2], T[3])
e(f"s_mov_b32 s{S_C}, {f2u(SCALE_LOG2E):#x}")
e(f"v_mul_f32 v{T[2]}, s{S_C}, v{T[2]}")
for i in range(16):
    e(f"v_fma_f32 v{S[i]}, v{S[i]}, s{S_C}, -v{T[2]}")
for i in range(16):
    e(f"v_exp_f32 v{S[i]}, v{S[i]}")
e("s_nop 0")
e(f"v_add_f32 v{T[4]}, v{S[0]}, v{S[1]}")
for i in range(2, 16):
    e(f"v_add_f32 v{T[4]}, v{T[4]}, v{S[i]}")
xreduce("v_add_f32", T[4], T[3])
e(f"v_rcp_f32 v{T[4]}, v{T[4]}")
e("s_nop 0")
for i in range(16):
    e(f"v_mul_f32 v{S[i]}, v{S[i]}, v{T[4]}")
for s_ in range(2):
    for half in range(2):
        kt = 2*s_ + half
        for pr in range(2):
            d = PF + s_*4 + half*2 + pr
            e(f"v_cvt_pk_bf16_f32 v{d}, v{S[kt*4+2*pr]}, v{S[kt*4+2*pr+1]}")
e(f"s_add_u32 s62, s{S_PB}, s{S_W2048}")
for s_ in range(2):
    e(f"buffer_store_dwordx4 {vr(PF+4*s_,4)}, v{V_L16}, {srd(SRD_WS)}, s62 offen offset:{s_*1024} sc1")
C.stamp("Ppub")
def flag_store(dw_off_bytes):
    e("s_waitcnt vmcnt(0)")
    e(f"s_lshl_b32 s62, s{S_WL}, 2")
    e(f"s_add_u32 s62, s62, s{S_FLGO}")
    e(f"v_mov_b32 v{T[0]}, 0")
    e(f"v_mov_b32 v{T[1]}, 1")
    e("s_mov_b64 s[60:61], exec")
    e("s_mov_b64 exec, 1")
    e(f"buffer_store_dword v{T[1]}, v{T[0]}, {srd(SRD_WS)}, s62 offen offset:{dw_off_bytes} sc1")
    e("s_mov_b64 exec, s[60:61]")
C.wait_lg(f"w0s0")
for m in w_mf(0, 0): e(m)
C.wait_lg_all()
fill = []
for j in range(1, 12):
    C.barrier(f"V{j}")
    w_addr(j)
    interleave2(w_mf(j-1, 1), w_rd(j, 0), fill)
    hs_prev, di_prev = divmod(j-1, 3)
    C.wait_lg(f"w{j}s0")
    if j == 1: flag_store(0)
    if di_prev == 2:
        assert not fill
        fill = ["s_nop 1", "s_nop 1"]*2 + pack_ops(hs_prev)
    interleave2(w_mf(j, 0), w_rd(j, 1), fill)
    C.wait_lg_all()
C.barrier("V12")
interleave2(w_mf(11, 1), [], fill)
assert not fill
e("s_nop 7")
for op in pack_ops(3): e(op)
C.stamp("VWdone")
def p_reads(hs):
    for mt in range(4):
        C.ds(f"ds_read_b128 {ar(A_PF[hs&1] + mt*4, 4)}, v{V_PR} offset:{hs*8192 + mt*2048}", f"p{hs}")
p_reads(0); p_reads(1)
for hs in range(4):
    C.wait_lg(f"p{hs}")
    for i in range(5):
        for mt in range(4):
            acc = OACC + (i*4 + mt)*4
            cin = "0" if hs == 0 else vr(acc, 4)
            e(f"v_mfma_f32_16x16x32_bf16 {vr(acc,4)}, {ar(A_VW + (hs*5+i)*4, 4)}, {ar(A_PF[hs&1] + mt*4, 4)}, {cin}")
    if hs + 2 < 4: p_reads(hs + 2)
C.stamp("final")
e("s_nop 7")
e(f"s_mul_i32 s62, s{S_WL}, 10240")
e(f"v_add_u32 v{T[0]}, s62, v{V_L16}")
e(f"s_xor_b32 s63, s{S_WL}, 2")
e(f"s_mul_i32 s63, s63, 10240")
e(f"v_add_u32 v{T[1]}, s63, v{V_L16}")
e(f"s_add_u32 s{S_T2}, s{S_PARTW}, 4096")
lk1 = C.newlabel(); lkd = C.newlabel()
e(f"s_cmp_ge_u32 s{S_WL}, 2")
e(f"s_cbranch_scc1 {lk1}")
def pair(send_mts, keep_mts):
    n = 0
    for i in range(5):
        for mt in send_mts:
            e(f"ds_write_b128 v{T[0]}, {vr(OACC + (i*4+mt)*4, 4)} offset:{RBUF + n*1024}"); n += 1
    e("s_waitcnt lgkmcnt(0)")
    e("s_barrier")
    n = 0
    for i in range(5):
        for k in range(2):
            e(f"ds_read_b128 {vr(OACC + (i*4+send_mts[k])*4, 4)}, v{T[1]} offset:{RBUF + n*1024}"); n += 1
    e("s_waitcnt lgkmcnt(0)")
    for k in range(2):
        for i in range(5):
            kp = OACC + (i*4+keep_mts[k])*4
            rc = OACC + (i*4+send_mts[k])*4
            for r in range(4):
                e(f"v_add_f32 v{kp+r}, v{kp+r}, v{rc+r}")
            e(f"v_cvt_pk_bf16_f32 v{kp}, v{kp}, v{kp+1}")
            e(f"v_cvt_pk_bf16_f32 v{kp+1}, v{kp+2}, v{kp+3}")
            tp = k*5 + i
            if tp*512 < 4096:
                e(f"buffer_store_dwordx2 {vr(kp,2)}, v{V_L8}, {srd(SRD_WS)}, s{S_PARTW} offen offset:{tp*512} sc1")
            else:
                e(f"buffer_store_dwordx2 {vr(kp,2)}, v{V_L8}, {srd(SRD_WS)}, s{S_T2} offen offset:{tp*512-4096} sc1")
pair([2, 3], [0, 1])
e(f"s_branch {lkd}")
C.label(lk1)
pair([0, 1], [2, 3])
C.label(lkd)
C.nbar += 1
C.stamp("partpub")
flag_store(16)
C.stamp("flagpub")
gather(C, S_WL)
C.stamp("done")
prof_end(C, 0)
if PROF == 9:
    e("s_waitcnt vmcnt(0)")
    e("s_memrealtime s[92:93]")
    e("s_memtime s[94:95]")
    e("s_waitcnt lgkmcnt(0)")
    e(f"s_cmp_lg_u32 s{S_WL}, 0")
    e("s_cbranch_scc1 L_p9")
    e("s_mov_b32 s62, 4")
    e("s_cmp_eq_u32 s2, 0")
    e("s_cbranch_scc1 L_p9a")
    e("s_mov_b32 s62, 36")
    e("s_cmp_eq_u32 s2, 255")
    e("s_cbranch_scc0 L_p9")
    e("L_p9a:")
    e("v_mov_b32 v4, s62")
    e("s_mov_b64 exec, 1")
    for i, r in enumerate([90, 92, 88, 94]):
        e(f"v_mov_b32 v5, s{r}")
        e(f"buffer_store_dword v5, v4, {srd(SRD_DBG)}, 0 offen offset:{4*i}")
    e("s_waitcnt vmcnt(0)")
    e("L_p9:")
e("s_endpgm")

def gen_loader(L, var):
    global e
    e = L.e
    def div_small(dst, src, d):
        magic = {24: 2731, 20: 3277}[d]
        e(f"v_mul_u32_u24 v{dst}, {magic}, v{src}")
        e(f"v_lshrrev_b32 v{dst}, 16, v{dst}")
    e("v_lshlrev_b32 v3, 4, v9")
    e(f"s_mul_i32 s{S_W6144}, s{S_WL}, 6144")
    e(f"s_mul_i32 s{S_W5120}, s{S_WL}, 5120")
    for j in range(6):
        e(f"v_add_u32 v4, {64*j}, v{V_LANE}")
        div_small(5, 4, 24)
        e("v_mul_u32_u24 v6, 24, v5")
        e("v_sub_u32 v6, v4, v6")
        e("v_bfe_u32 v7, v5, 1, 1")
        e("v_bfe_u32 v8, v5, 3, 1")
        e("v_lshl_add_u32 v7, v8, 1, v7")
        e("v_lshlrev_b32 v7, 1, v7")
        e("v_xor_b32 v6, v6, v7")
        e("v_add_u32 v5, v5, v3")
        e("v_mul_u32_u24 v5, 12288, v5")
        e(f"v_lshl_add_u32 v{V_WQ[j]}, v6, 4, v5")
    for j in range(2):
        e(f"v_add_u32 v4, {64*j}, v{V_LANE}")
        e("v_lshrrev_b32 v5, 3, v4")
        e("v_and_b32 v6, 7, v4")
        e("v_bfe_u32 v7, v5, 1, 3")
        e("v_xor_b32 v6, v6, v7")
        e("v_add_u32 v5, v5, v3")
        e("v_mul_u32_u24 v7, 1280, v5")
        e(f"v_lshl_add_u32 v{V_X[j]}, v6, 4, v7")
        e("v_mul_u32_u24 v7, 384, v5")
        e(f"v_lshl_add_u32 v{V_V[j]}, v6, 4, v7")
    e(f"s_mul_i32 s62, s{S_Q}, 160")
    e(f"s_mul_i32 s63, s{S_WL}, 40")
    e("s_add_u32 s62, s62, s63")
    e(f"v_min_u32 v4, 39, v{V_LANE}")
    e("v_add_u32 v4, s62, v4")
    e(f"v_lshlrev_b32 v{T[5]}, 7, v4")
    e(f"s_mul_i32 s62, s{S_B}, 48")
    e(f"s_mul_i32 s63, s{S_WL}, 12")
    e("s_add_u32 s62, s62, s63")
    e(f"v_min_u32 v4, 11, v{V_LANE}")
    e("v_add_u32 v4, s62, v4")
    e("v_mul_u32_u24 v5, 21846, v4")
    e("v_lshrrev_b32 v5, 16, v5")
    e("v_mul_u32_u24 v6, 3, v5")
    e("v_sub_u32 v6, v4, v6")
    e("v_add_u32 v5, 512, v5")
    e("v_mul_u32_u24 v5, 12288, v5")
    e(f"v_lshl_add_u32 v{T[6]}, v6, 7, v5")
    e("s_waitcnt lgkmcnt(0)")
    L.stamp("kernarg")
    e(f"s_mul_i32 s62, s{S_B}, 81920")
    mk_srd(L, SRD_X, S_KA+0, 62, 81920)
    e(f"s_mul_i32 s62, s{S_H}, 384")
    mk_srd(L, SRD_WQ, S_KA+6, 62, 640*12288 - 31*384)
    e(f"s_mov_b32 s{S_KC}, s{S_B}")
    def dma(vaddr, srdreg, soff, m0s, m0const, tag):
        e(f"s_add_u32 m0, s{m0s}, {m0const}")
        e("s_nop 0")
        so = f"s{soff}" if soff is not None else "0"
        L.vmem(f"buffer_load_dwordx4 v{vaddr}, {srd(srdreg)}, {so} offen {NT}lds", tag)
    def load_L(c):
        sb = LSLOT[c] * SLOT
        e(f"s_mul_i32 s{S_OWQ}, s{S_KC}, {64*12288}")
        e(f"s_lshl_b32 s{S_OX}, s{S_KC}, 7")
        for j in range(6): dma(V_WQ[j], SRD_WQ, S_OWQ, S_W6144, sb + WQ_IMG + j*1024, f"L{c}")
        for j in range(2): dma(V_X[j], SRD_X, S_OX, S_W2048, sb + X_IMG + j*1024, f"L{c}")
        e(f"s_add_u32 s{S_KC}, s{S_KC}, 1")
        e(f"s_cmp_ge_u32 s{S_KC}, 10")
        e(f"s_cselect_b32 s{S_KC}, 0, s{S_KC}")
    load_L(0)
    if int(os.environ.get("PRE", "1")):
        L.vmem(f"buffer_load_dword v{V_PRE[0]}, v{T[5]}, {srd(SRD_X)}, 0 offen {NT}", "pre")
        L.vmem(f"buffer_load_dword v{V_PRE[1]}, v{T[6]}, {srd(SRD_WQ)}, 0 offen {NT}", "pre")
    load_L(1)
    e(f"s_lshl_b32 s62, s{S_B}, 5")
    e(f"s_add_u32 s63, s62, s{S_H}")
    e(f"s_mul_i32 s63, s63, 24576")
    mk_srd(L, SRD_K, S_KA+2, 63, 24576)
    e(f"s_lshl_b32 s63, s{S_G}, 2")
    e(f"s_add_u32 s63, s63, s62")
    e(f"s_mul_i32 s63, s63, 24576")
    mk_srd(L, SRD_V, S_KA+4, 63, 4*24576)
    e(f"s_mul_i32 s62, s{S_G}, {768*1280}")
    e(f"s_mul_i32 s63, s{S_Q}, 320")
    e(f"s_add_u32 s62, s62, s63")
    mk_srd(L, SRD_WO, S_KA+8, 62, 768*1280 - 960)
    common_scalars(L)
    common_scalars2(L)
    e(f"s_lshr_b32 s62, s{S_B}, 1")
    e(f"s_add_u32 s62, s62, s{S_Q}")
    e(f"s_and_b32 s{S_RH}, s62, 3")
    e(f"s_and_b32 s62, s{S_B}, 1")
    e(f"s_lshl_b32 s{S_RD}, s62, 1")
    lb = L.newlabel()
    e(f"s_cmp_lg_u32 s{S_WL}, 0")
    e(f"s_cbranch_scc1 {lb}")
    e(f"v_lshlrev_b32 v4, 2, v{V_LANE}")
    e("v_mov_b32 v5, 0")
    e("s_mov_b64 s[62:63], exec")
    e("s_mov_b64 exec, 0xff")
    L.vmem(f"buffer_store_dword v5, v4, {srd(SRD_WS)}, s{S_FLGO} offen sc1", "clr", "st")
    e("s_mov_b64 exec, s[62:63]")
    L.label(lb)
    for j in range(6):
        e(f"v_add_u32 v4, {64*j}, v{V_LANE}")
        div_small(5, 4, 24)
        e("v_mul_u32_u24 v6, 24, v5")
        e("v_sub_u32 v6, v4, v6")
        e("v_bfe_u32 v7, v5, 1, 3")
        e("v_xor_b32 v6, v6, v7")
        e("v_add_u32 v5, v5, v3")
        e("v_mul_u32_u24 v5, 384, v5")
        e(f"v_lshl_add_u32 v{V_K[j]}, v6, 4, v5")
    for j in range(5):
        e(f"v_add_u32 v4, {64*j}, v{V_LANE}")
        div_small(5, 4, 20)
        e("v_mul_u32_u24 v6, 20, v5")
        e("v_sub_u32 v6, v4, v6")
        e("v_bfe_u32 v7, v5, 3, 1")
        e("v_lshlrev_b32 v7, 1, v7")
        e("v_xor_b32 v6, v6, v7")
        e("v_add_u32 v5, v5, v3")
        e("v_mul_u32_u24 v5, 1280, v5")
        e(f"v_lshl_add_u32 v{V_WO[j]}, v6, 4, v5")
    def w_offsets(j):
        hs, di = divmod(j, 3)
        e(f"s_add_u32 s62, s{S_RH}, {hs}")
        e("s_and_b32 s62, s62, 3")
        e(f"s_add_u32 s63, s{S_RD}, {di}")
        e("s_cmp_ge_u32 s63, 3")
        e(f"s_cselect_b32 s{S_T2}, 3, 0")
        e(f"s_sub_u32 s63, s63, s{S_T2}")
        e(f"s_mul_i32 s{S_OWO}, s62, {192*1280}")
        e(f"s_mul_i32 s{S_T2}, s63, {64*1280}")
        e(f"s_add_u32 s{S_OWO}, s{S_OWO}, s{S_T2}")
        e(f"s_mul_i32 s{S_OV}, s62, 24576")
        e(f"s_lshl_b32 s{S_T2}, s63, 7")
        e(f"s_add_u32 s{S_OV}, s{S_OV}, s{S_T2}")
    def load_W(j):
        sb = WSLOT[j] * SLOT
        w_offsets(j)
        for jj in range(5): dma(V_WO[jj], SRD_WO, S_OWO, S_W5120, sb + WO_IMG + jj*1024, f"W{j}")
        for jj in range(2): dma(V_V[jj], SRD_V, S_OV, S_W2048, sb + V_IMG + jj*1024, f"W{j}")
    def pre_V(j):
        w_offsets(j)
        e(f"v_and_b32 v4, 15, v{V_LANE}")
        e("v_add_u32 v4, v4, v3")
        e("v_mul_u32_u24 v4, 384, v4")
        L.vmem(f"buffer_load_dword v{V_PRE[2]}, v4, {srd(SRD_V)}, s{S_OV} offen {NT}", "pre")
    def load_K():
        for j in range(6): dma(V_K[j], SRD_K, None, S_W6144, KSLOT*SLOT + j*1024, "K")
    def p_loads():
        e(f"s_lshl_b32 s62, s{S_B}, 5")
        e(f"s_lshl_b32 s63, s{S_G}, 2")
        e(f"s_add_u32 s{S_T3}, s62, s63")
        e(f"s_add_u32 s62, s{S_RH}, s{S_WL}")
        e("s_and_b32 s62, s62, 3")
        e(f"s_add_u32 s62, s62, s{S_T3}")
        e("s_lshl_b32 s62, s62, 13")
        for f in range(8):
            if f == 4: e("s_add_u32 s62, s62, 4096")
            L.vmem(f"buffer_load_dwordx4 {vr(V_PD + f*4, 4)}, v{V_L16}, {srd(SRD_WS)}, s62 offen offset:{(f%4)*1024} sc1", "pld")
    names = [f"B{i}" for i in range(13)] + [f"V{j}" for j in range(1, 13)]
    for tau in range(25):
        if tau <= 9: L.wait_vm(f"L{tau}")
        if tau == 11: L.wait_vm("K")
        if 12 <= tau <= 23: L.wait_vm(f"W{tau-12}")
        if tau == 24:
            L.wait_vm("pld")
            e(f"s_lshl_b32 s62, s{S_WL}, 13")
            e(f"s_add_u32 s62, s62, {PIMG}")
            e(f"v_add_u32 v{T[2]}, s62, v{V_L16}")
            for f in range(8):
                L.ds(f"ds_write_b128 v{T[2]}, {vr(V_PD + f*4, 4)} offset:{f*1024}", "pw")
            L.wait_lg_all()
        L.barrier(names[tau])
        if 0 <= tau <= 7: load_L(tau + 2)
        if tau == KPOS: load_K()
        if tau == W0POS[var]: load_W(0)
        if tau == W1POS[var]:
            load_W(1); pre_V(2)
        if tau == W2POS: load_W(2)
        if tau == 12: load_W(3); load_W(4)
        if 13 <= tau <= 19: load_W(tau - 8)
        if tau == 3:
            lb = L.newlabel()
            e(f"s_cmp_lg_u32 s{S_WL}, 0")
            e(f"s_cbranch_scc1 {lb}")
            e(f"s_lshl_b32 s62, s{S_B}, 5")
            e(f"v_mov_b32 v4, s62")
            e("v_mov_b32 v5, 1")
            e("s_mov_b64 s[62:63], exec")
            e("s_mov_b64 exec, 1")
            L.e("s_waitcnt vmcnt(%d)" % sum(1 for (t,k) in L.vm[[i for i,(t,k) in enumerate(L.vm) if t=="clr"][0]+1:] if k=="ld"))
            L.vmem(f"buffer_atomic_add v5, v4, {srd(SRD_DBG)}, 0 offen sc1", "arr", "st")
            e("s_mov_b64 exec, s[62:63]")
            L.label(lb)
        if tau == 15:
            e(f"s_lshl_b32 s62, s{S_B}, 5")
            e(f"v_mov_b32 v{T[2]}, s62")
            L.vmem(f"buffer_load_dword v{T[1]}, v{T[2]}, {srd(SRD_DBG)}, 0 offen sc1", "cnt")
        if tau == 17:
            L.wait_vm("cnt")
            l0 = L.newlabel(); l1 = L.newlabel()
            e(f"s_mov_b32 s{S_CNT}, 0")
            L.label(l0)
            e(f"v_readfirstlane_b32 s62, v{T[1]}")
            e("s_cmp_ge_u32 s62, 32")
            e(f"s_cbranch_scc1 {l1}")
            e(f"s_add_u32 s{S_CNT}, s{S_CNT}, 1")
            e(f"s_cmp_gt_u32 s{S_CNT}, 200000")
            e(f"s_cbranch_scc1 {l1}")
            e("s_sleep 2")
            e(f"buffer_load_dword v{T[1]}, v{T[2]}, {srd(SRD_DBG)}, 0 offen sc1")
            e("s_waitcnt vmcnt(0)")
            e(f"s_branch {l0}")
            L.label(l1)
            e(f"s_add_u32 s62, s{S_RH}, s{S_WL}")
            e("s_and_b32 s62, s62, 3")
            e(f"s_lshl_b32 s62, s62, 7")
            e(f"s_add_u32 s{S_KC}, s62, s{S_FLGP}")
            e(f"v_lshlrev_b32 v{T[4]}, 2, v{V_LANE}")
            L.vmem(f"buffer_load_dword v{T[3]}, v{T[4]}, {srd(SRD_WS)}, s{S_KC} offen sc1", "pfl")
        if tau == 20:
            L.wait_vm("pfl")
            def issue(): e(f"buffer_load_dword v{T[3]}, v{T[4]}, {srd(SRD_WS)}, s{S_KC} offen sc1")
            poll_loop(L, issue, T[3], "0xf", first_issued=True)
            p_loads()
    L.stamp("pimg")
    L.barrier("R")
    lb = L.newlabel()
    e(f"s_cmp_lg_u32 s{S_W}, 4")
    e(f"s_cbranch_scc1 {lb}")
    e(f"s_mov_b32 s{S_KC}, 4")
    gather(L, S_KC)
    L.label(lb)
    L.stamp("done")
    prof_end(L, 4)

Ls = []
D = G(0); D.label("L_loader")
for v in range(1, NVAR):
    D.e(f"s_and_b32 s62, s{S_B}, {NVAR-1}")
    D.e(f"s_cmp_eq_u32 s62, {v}")
    D.e(f"s_cbranch_scc1 L_var{v}")
for v in range(NVAR):
    H = G(2)
    if v: H.label(f"L_var{v}")
    if PROF == 2: H.live.append((0, 64)); H.names.append("start"); H.nstamp = 1
    gen_loader(H, v)
    if v == NVAR-1: H.label("L_end")
    H.e("s_endpgm")
    assert C.nbar == H.nbar, (C.nbar, H.nbar)
    Ls.append(H)

out += P.o + C.o + D.o
for H in Ls: out += H.o
out += ['.section .rodata,"a"', ".p2align 6", f".amdhsa_kernel {NAME}", "  .amdhsa_next_free_vgpr 256", "  .amdhsa_next_free_sgpr 102",
        "  .amdhsa_accum_offset 120", "  .amdhsa_group_segment_fixed_size 0", "  .amdhsa_kernarg_size 64", "  .amdhsa_user_sgpr_count 2",
        "  .amdhsa_user_sgpr_kernarg_segment_ptr 1", "  .amdhsa_system_sgpr_workgroup_id_x 1", ".end_amdhsa_kernel"]
print("\n".join(out))
if PROF in (1, 2): open("names%d.txt" % PROF, "w").write(",".join({1: C, 2: Ls[0]}[PROF].names))
```

```python
import sys, os, math, struct

PROF = int(os.environ.get("PROF", "0"))
NOMFMA = int(os.environ.get("NOMFMA", "0"))
HOTLEAD = int(os.environ.get("HOTLEAD", "2"))

def f2u(f): return struct.unpack("<I", struct.pack("<f", f))[0]

class G:
    lab = 0
    def __init__(self, role):
        self.role = role
        self.o = []; self.vm = []; self.lg = []
        self.nstamp = 0; self.live = []; self.names = []; self.nbar = 0
    def e(self, s): self.o.append("    " + s)
    def label(self, s): self.o.append(s + ":")
    def newlabel(self, p="L"):
        G.lab += 1
        return f"{p}_{G.lab}"
    def vmem(self, s, tag, kind="ld"):
        self.e(s); self.vm.append((tag, kind))
    def wait_vm(self, tag):
        idxs = [i for i, (t, k) in enumerate(self.vm) if t == tag]
        if not idxs: return
        idx = max(idxs)
        n = sum(1 for (t, k) in self.vm[idx+1:] if k == "ld")
        self.e(f"s_waitcnt vmcnt({min(n, 63)})")
    def ds(self, s, tag):
        self.e(s); self.lg.append(tag)
    def wait_lg(self, tag):
        idx = max(i for i, t in enumerate(self.lg) if t == tag)
        n = len(self.lg) - 1 - idx
        self.e(f"s_waitcnt lgkmcnt({min(n, 15)})")
    def wait_lg_all(self):
        self.e("s_waitcnt lgkmcnt(0)")
    def barrier(self, name=""):
        self.e("s_barrier"); self.nbar += 1
        if name: self.stamp(name)
    def stamp(self, name=""):
        if PROF == self.role:
            r = 64 + 2*(self.nstamp % 8)
            self.flush_stamps(keep=7)
            self.e(f"s_memtime s[{r}:{r+1}]")
            self.live.append((self.nstamp, r))
            self.names.append(name or str(self.nstamp))
            self.nstamp += 1
    def flush_stamps(self, keep=0):
        while len(self.live) > keep:
            n, r = self.live.pop(0)
            self.e(f"v_writelane_b32 v{V_STAMP}, s{r}, {n}")

SLOT = 32768
WQ_IMG = 0; X_IMG = 24576
WO_IMG = 0; V_IMG = 20480
PREG = 0
PART = 2 << 20
FLG = 8 << 20
STAMPS = 16 << 20
WS_BYTES = 268435456
SCALE_LOG2E = (192 ** -0.5) * math.log2(math.e)

S_W = 3; S_B = 4; S_G = 5; S_Q = 6; S_H = 7
SRD_X = 8; SRD_WQ = 12; SRD_K = 16; SRD_V = 20; SRD_WO = 24; SRD_WS = 28; SRD_OUT = 32; SRD_DBG = 36
S_KA = 40
S_XB0 = 56; S_XB1 = 57
S_XO0 = 58; S_XO1 = 59
S_VO0 = 60; S_VO1 = 61
S_C = 44; S_PB = 45; S_T2 = 46; S_T3 = 47; S_CNT = 48; S_PARTW = 50; S_PARTR = 51; S_OUTO = 52; S_FLGO = 53
S_WL = 98; S_H1024 = 99; S_W2048 = 100; S_T4 = 101
S_SO = 40; S_SO2 = 41; S_FLGR = 42; S_FLGP = 43
def srd(r): return f"s[{r}:{r+3}]"
def vr(b, n): return f"v[{b}:{b+n-1}]"
def ar(b, n): return f"a[{b}:{b+n-1}]"

V_LANE = 1; V_L16 = 10; V_L8 = 11; V_M = 12; V_G4 = 13
T = list(range(14, 24))
V_STAMP = 39
V_WQ = list(range(24, 31))
V_X = [31, 32]; V_V = [33, 34]
V_WO = list(range(40, 46))
V_K = list(range(80, 104))
V_PD = 48
V_A = [24, 25, 26]; V_B = [27, 28]; V_CA = [29, 30, 31]; V_CB = [32, 33]; V_QW = [34, 35, 36]; V_KR = [37, 38]
V_VR = [2, 3]; V_W = [4, 5]; V_PR = 6
ACC1 = 40; SACC = 40; PF = 56; ACC2 = [40, 80]; OACC = 40
A_SET = [0, 28]; A_KF = 0; A_QF = 96; A_VW = 56; A_PF = [0, 16]
GR = 48

LSLOT = [c % 5 for c in range(10)]
KSLOT = 0; QSLOT = 4
WSLOT = [1, 2, 3, 0, 4, 1, 2, 3, 0, 4, 1, 2]
PIMG = 3 * SLOT
RBUF = 0
def needL(c): return c
def needW(j): return 12 + j
freeL = lambda c: -1 if c < 5 else (c - 5) + 1
freeW = [7, 8, 9, 12, 12, 13, 14, 15, 16, 17, 18, 19]
coldL = [max(-1, freeL(c)) for c in range(10)]
hotL = [max(-1, max(freeL(c), needL(c) - HOTLEAD)) for c in range(10)]
coldW = freeW[:]
hotW = [max(freeW[j], needW(j) - HOTLEAD) for j in range(12)]
coldK = {6: range(0, 8), 7: range(8, 16), 8: range(16, 24)}

NAME = "standalone__mha_block_cached__near_ridge_kernel"
hdr = open("standalone__mha_block_cached__near_ridge.s.ref").read().split("\n")
head = [l for l in hdr if l.startswith(";") and "@launch" not in l and "Override" not in l and "grid=ceil" not in l]
out = head + [f"; @launch grid=(256,1,1) block=(512,1,1) lds=163840",
 '.amdgcn_target "amdgcn-amd-amdhsa--gfx950"', ".text", f".globl {NAME}", ".p2align 8", f".type {NAME},@function", f"{NAME}:"]

P = G(0); e = P.e
e("s_cmp_ge_u32 s2, 256")
e("s_cbranch_scc1 L_end")
if PROF: e("s_memtime s[64:65]")
e(f"s_load_dwordx16 s[{S_KA}:{S_KA+15}], s[0:1], 0")
e(f"s_and_b32 s{S_G}, s2, 7")
e("s_lshr_b32 s62, s2, 3")
e(f"s_and_b32 s{S_Q}, s62, 3")
e(f"s_lshr_b32 s{S_B}, s2, 5")
e(f"s_lshl_b32 s{S_H}, s{S_G}, 2")
e(f"s_add_u32 s{S_H}, s{S_H}, s{S_Q}")
e(f"v_lshrrev_b32 v2, 6, v0")
e(f"v_and_b32 v{V_LANE}, 63, v0")
e(f"v_readfirstlane_b32 s{S_W}, v2")
e(f"v_and_b32 v{V_M}, 15, v{V_LANE}")
e(f"v_lshrrev_b32 v{V_G4}, 4, v{V_LANE}")
e(f"v_lshlrev_b32 v{V_L16}, 4, v{V_LANE}")
e(f"v_lshlrev_b32 v{V_L8}, 3, v{V_LANE}")
e(f"s_and_b32 s{S_WL}, s{S_W}, 3")
e(f"v_and_b32 v9, 3, v2")
e(f"s_lshl_b32 s{S_H1024}, s{S_WL}, 10")
e(f"s_lshl_b32 s{S_W2048}, s{S_WL}, 11")
e(f"s_cmp_ge_u32 s{S_W}, 4")
e("s_cbranch_scc1 L_loader")

def mk_srd(g, r, plo, off_sreg, nbytes):
    e = g.e
    if off_sreg is None:
        e(f"s_mov_b32 s{r}, s{plo}")
        e(f"s_mov_b32 s{r+1}, s{plo+1}")
    else:
        e(f"s_add_u32 s{r}, s{plo}, s{off_sreg}")
        e(f"s_addc_u32 s{r+1}, s{plo+1}, 0")
    e(f"s_mov_b32 s{r+2}, {nbytes}")
    e(f"s_mov_b32 s{r+3}, 0x00020000")

def common_scalars(g):
    mk_srd(g, SRD_OUT, S_KA+10, None, 8*64*640*2)
    mk_srd(g, SRD_DBG, S_KA+12, None, 256)
    mk_srd(g, SRD_WS, S_KA+14, None, WS_BYTES)

def common_scalars2(g):
    e = g.e
    e(f"s_lshl_b32 s62, s{S_B}, 5")
    e(f"s_add_u32 s62, s62, s{S_H}")
    e(f"s_lshl_b32 s{S_PB}, s62, 13")
    e(f"s_lshl_b32 s63, s62, 7")
    e(f"s_add_u32 s{S_FLGO}, s63, {FLG}")
    e(f"s_lshl_b32 s62, s{S_B}, 5")
    e(f"s_lshl_b32 s63, s{S_G}, 2")
    e(f"s_add_u32 s63, s63, s62")
    e(f"s_lshl_b32 s63, s63, 7")
    e(f"s_add_u32 s{S_FLGP}, s63, {FLG}")
    e(f"s_add_u32 s63, s62, s{S_Q}")
    e(f"s_lshl_b32 s63, s63, 7")
    e(f"s_add_u32 s{S_FLGR}, s63, {FLG}")
    e(f"s_lshl_b32 s62, s{S_B}, 2")
    e(f"s_add_u32 s62, s62, s{S_Q}")
    e(f"s_lshl_b32 s63, s62, 3")
    e(f"s_add_u32 s63, s63, s{S_G}")
    e(f"s_mul_i32 s63, s63, 20480")
    e(f"s_add_u32 s63, s63, {PART}")
    e(f"s_mul_i32 s{S_PARTW}, s{S_WL}, 5120")
    e(f"s_add_u32 s{S_PARTW}, s{S_PARTW}, s63")
    e(f"s_mul_i32 s62, s62, {8*20480}")
    e(f"s_mul_i32 s63, s{S_G}, 2560")
    e(f"s_add_u32 s62, s62, s63")
    e(f"s_add_u32 s{S_PARTR}, s62, {PART}")
    e(f"s_lshr_b32 s62, s{S_G}, 2")
    e(f"s_lshl_b32 s62, s62, 1")
    e(f"s_and_b32 s63, s{S_G}, 1")
    e(f"s_add_u32 s62, s62, s63")
    e(f"s_lshl_b32 s62, s62, 4")
    e(f"s_lshl_b32 s63, s{S_B}, 6")
    e(f"s_add_u32 s62, s62, s63")
    e(f"s_mul_i32 s62, s62, 1280")
    e(f"s_mul_i32 s63, s{S_Q}, 320")
    e(f"s_add_u32 s62, s62, s63")
    e(f"s_lshr_b32 s63, s{S_G}, 1")
    e(f"s_and_b32 s63, s63, 1")
    e(f"s_mul_i32 s63, s63, 160")
    e(f"s_add_u32 s{S_OUTO}, s62, s63")

def poll_loop(g, issue_fn, datareg, lanes_mask, first_issued=False):
    e = g.e
    l0 = g.newlabel(); l1 = g.newlabel()
    e(f"s_mov_b32 s{S_CNT}, 0")
    e(f"s_mov_b64 s[62:63], exec")
    e(f"s_mov_b64 exec, {lanes_mask}")
    if not first_issued:
        issue_fn()
        e("s_waitcnt vmcnt(0)")
    g.label(l0)
    e(f"v_cmp_ne_u32 vcc, 1, v{datareg}")
    e(f"s_cbranch_vccz {l1}")
    e(f"s_add_u32 s{S_CNT}, s{S_CNT}, 1")
    e(f"s_cmp_gt_u32 s{S_CNT}, 200000")
    e(f"s_cbranch_scc1 {l1}")
    issue_fn()
    e("s_waitcnt vmcnt(0)")
    e(f"s_branch {l0}")
    g.label(l1)
    e(f"s_mov_b64 exec, s[62:63]")

def gather(g, tile_sreg):
    e = g.e
    e(f"v_mul_u32_u24 v{T[8]}, 1280, v{V_M}")
    e(f"v_lshl_add_u32 v{T[8]}, v{V_G4}, 3, v{T[8]}")
    e(f"v_lshlrev_b32 v{T[0]}, 9, v{V_LANE}")
    e(f"s_lshr_b32 s{S_T3}, s{S_G}, 1")
    e(f"s_lshl_b32 s{S_T3}, s{S_T3}, 2")
    e(f"s_add_u32 s{S_T3}, s{S_T3}, 16")
    e(f"s_add_u32 s{S_T3}, s{S_T3}, s{S_FLGR}")
    def issue(): e(f"buffer_load_dword v{T[1]}, v{T[0]}, {srd(SRD_WS)}, s{S_T3} offen sc1")
    poll_loop(g, issue, T[1], "0xff")
    e(f"s_lshl_b32 s62, s{tile_sreg}, 9")
    e(f"s_add_u32 s{S_T3}, s{S_PARTR}, s62")
    for src in range(8):
        r = GR + src*2
        e(f"s_add_u32 s62, s{S_T3}, {src*20480}")
        e(f"buffer_load_dwordx2 {vr(r,2)}, v{V_L8}, {srd(SRD_WS)}, s62 offen sc1")
    for src in range(8):
        r = GR + src*2
        e(f"s_waitcnt vmcnt({7-src})")
        for d in range(2):
            if src == 0:
                e(f"v_lshlrev_b32 v{T[2+2*d]}, 16, v{r+d}")
                e(f"v_and_b32 v{T[3+2*d]}, 0xffff0000, v{r+d}")
            else:
                e(f"v_lshlrev_b32 v{T[6]}, 16, v{r+d}")
                e(f"v_and_b32 v{T[7]}, 0xffff0000, v{r+d}")
                e(f"v_add_f32 v{T[2+2*d]}, v{T[2+2*d]}, v{T[6]}")
                e(f"v_add_f32 v{T[3+2*d]}, v{T[3+2*d]}, v{T[7]}")
    e(f"v_cvt_pk_bf16_f32 v{T[6]}, v{T[2]}, v{T[3]}")
    e(f"v_cvt_pk_bf16_f32 v{T[7]}, v{T[4]}, v{T[5]}")
    e(f"s_lshl_b32 s62, s{tile_sreg}, 5")
    e(f"s_add_u32 s62, s62, s{S_OUTO}")
    e(f"buffer_store_dwordx2 {vr(T[6],2)}, v{T[8]}, {srd(SRD_OUT)}, s62 offen")

def prof_end(g, who):
    e = g.e
    if PROF == g.role:
        e("s_memrealtime s[96:97]")
        e("s_waitcnt lgkmcnt(0) vmcnt(0)")
        lb = g.newlabel()
        e(f"s_cmp_lg_u32 s{S_W}, {who}")
        e(f"s_cbranch_scc1 {lb}")
        e("s_lshl_b32 s62, s2, 8")
        e(f"s_add_u32 s62, s62, {STAMPS}")
        g.flush_stamps(0)
        e(f"v_writelane_b32 v{V_STAMP}, s96, 63")
        e(f"v_lshlrev_b32 v4, 2, v{V_LANE}")
        e(f"buffer_store_dword v{V_STAMP}, v4, {srd(SRD_WS)}, s62 offen")
        g.label(lb)

C = G(1); e = C.e
if PROF == 1: C.live.append((0, 64)); C.names.append("start"); C.nstamp = 1
e(f"v_bfe_u32 v4, v{V_LANE}, 2, 2")
e(f"v_and_b32 v5, 3, v{V_LANE}")
e(f"v_lshl_add_u32 v6, v{V_G4}, 3, v4")
e("v_lshrrev_b32 v7, 1, v4")
e(f"v_and_b32 v8, 1, v{V_G4}")
e("v_lshl_add_u32 v7, v8, 1, v7")
e("v_mul_u32_u24 v8, 384, v6")
e("v_lshl_add_u32 v8, v5, 3, v8")
e(f"v_mul_u32_u24 v{T[0]}, 3, v9")
for i in range(3):
    e(f"v_add_u32 v{T[1]}, {i}, v{T[0]}")
    e(f"v_xor_b32 v{T[1]}, v{T[1]}, v7")
    e(f"v_lshl_add_u32 v{V_A[i]}, v{T[1]}, 5, v8")
e("v_mul_u32_u24 v8, 320, v6")
e("v_lshl_add_u32 v8, v5, 3, v8")
e(f"v_and_b32 v{T[2]}, 1, v9")
e(f"v_mul_u32_u24 v7, 160, v{T[2]}")
e("v_add_u32 v8, v8, v7")
e(f"v_and_b32 v7, 1, v{V_G4}")
e("v_lshlrev_b32 v7, 5, v7")
e(f"v_add_u32 v{T[3]}, v8, v7")
e(f"v_sub_u32 v{T[4]}, v8, v7")
e(f"v_cmp_eq_u32 vcc, 0, v{T[2]}")
e("s_nop 1")
e(f"v_cndmask_b32 v{T[5]}, v{T[4]}, v{T[3]}, vcc")
e(f"v_cndmask_b32 v{T[6]}, v{T[3]}, v{T[4]}, vcc")
e(f"v_bfe_u32 v7, v{V_M}, 1, 3")
for s_ in range(2):
    e(f"v_add_u32 v8, {4*s_}, v{V_G4}")
    e("v_xor_b32 v8, v8, v7")
    e("v_lshlrev_b32 v8, 4, v8")
    e(f"v_lshl_add_u32 v{T[1]}, v{V_M}, 7, v8")
    e(f"v_add_u32 v{V_B[s_]}, {X_IMG}, v{T[1]}")
    e("v_lshrrev_b32 v4, 1, v9")
    e("v_lshlrev_b32 v4, 12, v4")
    e(f"v_add_u32 v4, v4, v{T[1]}")
    e(f"v_add_u32 v{T[7+s_]}, {V_IMG}, v4")
    e(f"v_mul_u32_u24 v{T[1]}, 384, v{V_M}")
    e(f"v_add_u32 v{V_KR[s_]}, v{T[1]}, v8")
for i in range(3):
    e(f"v_add_u32 v4, {i}, v{T[0]}")
    e("v_lshlrev_b32 v4, 1, v4")
    e(f"v_lshrrev_b32 v5, 1, v{V_G4}")
    e("v_add_u32 v4, v4, v5")
    e("v_xor_b32 v4, v4, v7")
    e("v_lshlrev_b32 v4, 4, v4")
    e(f"v_and_b32 v5, 1, v{V_G4}")
    e("v_lshl_add_u32 v4, v5, 3, v4")
    e(f"v_mul_u32_u24 v5, 384, v{V_M}")
    e(f"v_add_u32 v{V_QW[i]}, v4, v5")
    e(f"v_add_u32 v{V_QW[i]}, {QSLOT*SLOT}, v{V_QW[i]}")
e("v_lshrrev_b32 v4, 1, v9")
e("v_lshlrev_b32 v4, 10, v4")
e(f"v_add_u32 v4, v4, v{V_L16}")
e(f"v_add_u32 v{V_PR}, {PIMG}, v4")
e(f"v_mov_b32 v{V_VR[0]}, v{T[7]}")
e(f"v_mov_b32 v{V_VR[1]}, v{T[8]}")
e(f"v_mov_b32 v{V_W[0]}, v{T[5]}")
e(f"v_mov_b32 v{V_W[1]}, v{T[6]}")
e("s_waitcnt lgkmcnt(0)")
C.stamp("kernarg")
common_scalars(C)
common_scalars2(C)

def interleave(mf, rd, per=None):
    rd = list(rd)
    n = len(mf)
    plan = [0]*n
    k = 0; left = len(rd)
    span = max(1, int(n*0.7))
    for idx in range(left):
        plan[min(n-1, idx*span//left)] += 1
    for k in range(n):
        e(mf[k])
        for _ in range(plan[k]):
            t, tag = rd.pop(0); C.ds(t, tag)
    assert not rd

def p1_rd(c, s_):
    base = A_SET[s_]; r = []
    for mt in range(4):
        r.append((f"ds_read_b128 {ar(base + 12 + mt*4, 4)}, v{V_CB[s_]} offset:{mt*2048}", f"c{c}s{s_}"))
    for i in range(3):
        for hf in range(2):
            r.append((f"ds_read_b64_tr_b16 {ar(base + i*4 + 2*hf, 2)}, v{V_CA[i]} offset:{12288*s_ + 1536*hf}", f"c{c}s{s_}"))
    return r
def p1_mf(c, s_):
    base = A_SET[s_]; r = []
    for i in range(3):
        for mt in range(4):
            acc = ACC1 + (i*4 + mt)*4
            cin = "0" if (c == 0 and s_ == 0) else vr(acc, 4)
            r.append(f"v_mfma_f32_16x16x32_bf16 {vr(acc,4)}, {ar(base + i*4,4)}, {ar(base + 12 + mt*4,4)}, {cin}" if not NOMFMA else "s_nop 0")
    return r

for c in range(10):
    sb = LSLOT[c] * SLOT
    C.barrier(f"B{c}")
    for i in range(3): e(f"v_add_u32 v{V_CA[i]}, {sb}, v{V_A[i]}")
    for s_ in range(2): e(f"v_add_u32 v{V_CB[s_]}, {sb}, v{V_B[s_]}")
    if c == 0:
        for t, tag in p1_rd(c, 0): C.ds(t, tag)
    else:
        interleave(p1_mf(c-1, 1), p1_rd(c, 0))
    C.wait_lg(f"c{c}s0")
    interleave(p1_mf(c, 0), p1_rd(c, 1))
    C.wait_lg_all()
C.barrier("B10")
for m in p1_mf(9, 1): e(m)
e("s_nop 7")
for i in range(3):
    for mt in range(4):
        acc = ACC1 + (i*4 + mt)*4
        t0 = T[2*((i*4+mt) % 4)]
        e(f"v_cvt_pk_bf16_f32 v{t0}, v{acc}, v{acc+1}")
        e(f"v_cvt_pk_bf16_f32 v{t0+1}, v{acc+2}, v{acc+3}")
        C.ds(f"ds_write_b64 v{V_QW[i]}, {vr(t0,2)} offset:{mt*6144}", "qw")
e(f"s_mul_i32 s62, s{S_WL}, {16*384}")
e(f"s_add_u32 s62, s62, {QSLOT*SLOT}")
for p in range(2):
    e(f"v_add_u32 v{V_CA[p]}, s62, v{V_KR[p]}")
    e(f"v_add_u32 v{V_CB[p]}, {KSLOT*SLOT}, v{V_KR[p]}")
C.wait_lg_all()
C.barrier("B11")
for s_ in range(6):
    C.ds(f"ds_read_b128 {ar(A_QF + 4*s_, 4)}, v{V_CA[s_&1]} offset:{(s_>>1)*128}", f"sk{s_}")
    for kt in range(4):
        C.ds(f"ds_read_b128 {ar(A_KF + (s_*4+kt)*4, 4)}, v{V_CB[s_&1]} offset:{kt*6144 + (s_>>1)*128}", f"sk{s_}")
for s_ in range(6):
    C.wait_lg(f"sk{s_}")
    for kt in range(4):
        acc = SACC + kt*4
        cin = "0" if s_ == 0 else vr(acc, 4)
        e(f"v_mfma_f32_16x16x32_bf16 {vr(acc,4)}, {ar(A_KF + (s_*4+kt)*4, 4)}, {ar(A_QF + 4*s_, 4)}, {cin}")
C.barrier("B12")

def w_addr(j):
    sb = WSLOT[j] * SLOT
    for s_ in range(2): e(f"v_add_u32 v{V_CB[s_]}, {sb}, v{V_VR[s_]}")
    for p in range(2): e(f"v_add_u32 v{V_CA[p]}, {sb}, v{V_W[p]}")
def w_rd(j, s_):
    base = A_SET[s_]; r = []
    for a in range(2):
        r.append((f"ds_read_b128 {ar(base + a*4, 4)}, v{V_CB[s_]} offset:{a*2048}", f"w{j}s{s_}"))
    for i in range(5):
        for hf in range(2):
            r.append((f"ds_read_b64_tr_b16 {ar(base + 8 + i*4 + 2*hf, 2)}, v{V_CA[i&1]} offset:{i*32 + (32*s_ + 4*hf)*320}", f"w{j}s{s_}"))
    return r
def w_mf(j, s_):
    hs, di = divmod(j, 3)
    base = A_SET[s_]; accb = ACC2[hs & 1]; r = []
    for i in range(5):
        for a in range(2):
            acc = accb + (a*5 + i)*4
            cin = "0" if (di == 0 and s_ == 0) else vr(acc, 4)
            r.append(f"v_mfma_f32_16x16x32_bf16 {vr(acc,4)}, {ar(base + a*4, 4)}, {ar(base + 8 + i*4, 4)}, {cin}" if not NOMFMA else "s_nop 0")
    return r
def pack_ops(hs):
    ops = []
    accb = ACC2[hs & 1]
    for i in range(5):
        for a in range(2):
            acc = accb + (a*5 + i)*4
            for pr in range(2):
                ops.append(f"v_cvt_pk_bf16_f32 v{T[2 + a*2 + pr + 4*(i&1)]}, v{acc+2*pr}, v{acc+2*pr+1}")
        for k in range(4):
            ops.append(f"v_accvgpr_write_b32 a{A_VW + (hs*5+i)*4 + k}, v{T[2+k+4*(i&1)]}")
    return ops
def interleave2(mf, rd, fill):
    rd = list(rd); n = len(mf)
    plan = [0]*n
    span = max(1, int(n*0.7)); left = len(rd)
    for idx in range(left): plan[min(n-1, idx*span//left)] += 1
    for k in range(n):
        e(mf[k])
        for _ in range(plan[k]):
            t, tag = rd.pop(0); C.ds(t, tag)
        for _ in range(2):
            if fill: e(fill.pop(0))

w_addr(0)
for t, tag in w_rd(0, 0) + w_rd(0, 1): C.ds(t, tag)
S = [SACC + i for i in range(16)]
e("s_nop 4")
e(f"v_max3_f32 v{T[2]}, v{S[0]}, v{S[1]}, v{S[2]}")
for i in range(3, 15, 2):
    e(f"v_max3_f32 v{T[2]}, v{T[2]}, v{S[i]}, v{S[i+1]}")
e(f"v_max_f32 v{T[2]}, v{T[2]}, v{S[15]}")
def xreduce(op, r, t):
    for sw in ("v_permlane16_swap_b32", "v_permlane32_swap_b32"):
        e(f"v_mov_b32 v{t}, v{r}")
        e("s_nop 1")
        e(f"{sw} v{r}, v{t}")
        e("s_nop 1")
        e(f"{op} v{r}, v{r}, v{t}")
xreduce("v_max_f32", T[2], T[3])
e(f"s_mov_b32 s{S_C}, {f2u(SCALE_LOG2E):#x}")
e(f"v_mul_f32 v{T[2]}, s{S_C}, v{T[2]}")
for i in range(16):
    e(f"v_fma_f32 v{S[i]}, v{S[i]}, s{S_C}, -v{T[2]}")
for i in range(16):
    e(f"v_exp_f32 v{S[i]}, v{S[i]}")
e("s_nop 0")
e(f"v_add_f32 v{T[4]}, v{S[0]}, v{S[1]}")
for i in range(2, 16):
    e(f"v_add_f32 v{T[4]}, v{T[4]}, v{S[i]}")
xreduce("v_add_f32", T[4], T[3])
e(f"v_rcp_f32 v{T[4]}, v{T[4]}")
e("s_nop 0")
for i in range(16):
    e(f"v_mul_f32 v{S[i]}, v{S[i]}, v{T[4]}")
for s_ in range(2):
    for half in range(2):
        kt = 2*s_ + half
        for pr in range(2):
            d = PF + s_*4 + half*2 + pr
            e(f"v_cvt_pk_bf16_f32 v{d}, v{S[kt*4+2*pr]}, v{S[kt*4+2*pr+1]}")
e(f"s_add_u32 s62, s{S_PB}, s{S_W2048}")
for s_ in range(2):
    e(f"buffer_store_dwordx4 {vr(PF+4*s_,4)}, v{V_L16}, {srd(SRD_WS)}, s62 offen offset:{s_*1024} sc1")
C.stamp("Ppub")
def flag_store(dw_off_bytes):
    e("s_waitcnt vmcnt(0)")
    e(f"s_lshl_b32 s62, s{S_WL}, 2")
    e(f"s_add_u32 s62, s62, s{S_FLGO}")
    e(f"v_mov_b32 v{T[0]}, 0")
    e(f"v_mov_b32 v{T[1]}, 1")
    e("s_mov_b64 s[60:61], exec")
    e("s_mov_b64 exec, 1")
    e(f"buffer_store_dword v{T[1]}, v{T[0]}, {srd(SRD_WS)}, s62 offen offset:{dw_off_bytes} sc1")
    e("s_mov_b64 exec, s[60:61]")
C.wait_lg(f"w0s0")
for m in w_mf(0, 0): e(m)
C.wait_lg_all()
fill = []
for j in range(1, 12):
    C.barrier(f"V{j}")
    w_addr(j)
    interleave2(w_mf(j-1, 1), w_rd(j, 0), fill)
    hs_prev, di_prev = divmod(j-1, 3)
    C.wait_lg(f"w{j}s0")
    if j == 1: flag_store(0)
    if di_prev == 2:
        assert not fill
        fill = ["s_nop 1", "s_nop 1"]*2 + pack_ops(hs_prev)
    interleave2(w_mf(j, 0), w_rd(j, 1), fill)
    C.wait_lg_all()
C.barrier("V12")
interleave2(w_mf(11, 1), [], fill)
assert not fill
e("s_nop 7")
for op in pack_ops(3): e(op)
C.stamp("VWdone")
def p_reads(hs):
    for mt in range(4):
        C.ds(f"ds_read_b128 {ar(A_PF[hs&1] + mt*4, 4)}, v{V_PR} offset:{hs*8192 + mt*2048}", f"p{hs}")
p_reads(0); p_reads(1)
for hs in range(4):
    C.wait_lg(f"p{hs}")
    for i in range(5):
        for mt in range(4):
            acc = OACC + (i*4 + mt)*4
            cin = "0" if hs == 0 else vr(acc, 4)
            e(f"v_mfma_f32_16x16x32_bf16 {vr(acc,4)}, {ar(A_VW + (hs*5+i)*4, 4)}, {ar(A_PF[hs&1] + mt*4, 4)}, {cin}")
    if hs + 2 < 4: p_reads(hs + 2)
C.stamp("final")
e("s_nop 7")
e(f"s_mul_i32 s62, s{S_WL}, 10240")
e(f"v_add_u32 v{T[0]}, s62, v{V_L16}")
e(f"s_xor_b32 s63, s{S_WL}, 2")
e(f"s_mul_i32 s63, s63, 10240")
e(f"v_add_u32 v{T[1]}, s63, v{V_L16}")
e(f"s_add_u32 s{S_T2}, s{S_PARTW}, 4096")
lk1 = C.newlabel(); lkd = C.newlabel()
e(f"s_cmp_ge_u32 s{S_WL}, 2")
e(f"s_cbranch_scc1 {lk1}")
def pair(send_mts, keep_mts):
    n = 0
    for i in range(5):
        for mt in send_mts:
            e(f"ds_write_b128 v{T[0]}, {vr(OACC + (i*4+mt)*4, 4)} offset:{RBUF + n*1024}"); n += 1
    e("s_waitcnt lgkmcnt(0)")
    e("s_barrier")
    n = 0
    for i in range(5):
        for k in range(2):
            e(f"ds_read_b128 {vr(OACC + (i*4+send_mts[k])*4, 4)}, v{T[1]} offset:{RBUF + n*1024}"); n += 1
    e("s_waitcnt lgkmcnt(0)")
    for k in range(2):
        for i in range(5):
            kp = OACC + (i*4+keep_mts[k])*4
            rc = OACC + (i*4+send_mts[k])*4
            for r in range(4):
                e(f"v_add_f32 v{kp+r}, v{kp+r}, v{rc+r}")
            e(f"v_cvt_pk_bf16_f32 v{kp}, v{kp}, v{kp+1}")
            e(f"v_cvt_pk_bf16_f32 v{kp+1}, v{kp+2}, v{kp+3}")
            tp = k*5 + i
            if tp*512 < 4096:
                e(f"buffer_store_dwordx2 {vr(kp,2)}, v{V_L8}, {srd(SRD_WS)}, s{S_PARTW} offen offset:{tp*512} sc1")
            else:
                e(f"buffer_store_dwordx2 {vr(kp,2)}, v{V_L8}, {srd(SRD_WS)}, s{S_T2} offen offset:{tp*512-4096} sc1")
pair([2, 3], [0, 1])
e(f"s_branch {lkd}")
C.label(lk1)
pair([0, 1], [2, 3])
C.label(lkd)
C.nbar += 1
C.stamp("partpub")
flag_store(16)
C.stamp("flagpub")
gather(C, S_WL)
C.stamp("done")
prof_end(C, 0)
e("s_endpgm")

def gen_loader(L, cold):
    global e
    e = L.e
    nWQ = 3 if cold else 7
    nWO = 3 if cold else 6
    def div_small(dst, src, d):
        magic = {24: 2731, 20: 3277}[d]
        e(f"v_mul_u32_u24 v{dst}, {magic}, v{src}")
        e(f"v_lshrrev_b32 v{dst}, 16, v{dst}")
    if cold: e(f"v_mov_b32 v3, v{V_LANE}")
    else:    e(f"v_lshl_add_u32 v3, v9, 6, v{V_LANE}")
    e(f"s_lshl_b32 s62, s{S_B}, 3")
    def beta_wq(k): return k if cold else 3 + 3*k
    for k in range(nWQ):
        e(f"v_add_u32 v4, {64*beta_wq(k)}, v3")
        div_small(5, 4, 24)
        e("v_mul_u32_u24 v6, 24, v5")
        e("v_sub_u32 v6, v4, v6")
        e("v_bfe_u32 v7, v5, 1, 1")
        e("v_bfe_u32 v8, v5, 3, 1")
        e("v_lshl_add_u32 v7, v8, 1, v7")
        e("v_lshlrev_b32 v7, 1, v7")
        e("v_xor_b32 v6, v6, v7")
        e("v_add_u32 v5, s62, v5")
        e("v_and_b32 v5, 63, v5")
        e("v_mul_u32_u24 v5, 12288, v5")
        e(f"v_lshl_add_u32 v{V_WQ[k]}, v6, 4, v5")
    for par in range(2):
        e(f"v_lshrrev_b32 v4, 3, v{V_LANE}")
        e(f"v_and_b32 v5, 7, v{V_LANE}")
        e("v_lshrrev_b32 v6, 1, v4")
        if par: e("v_or_b32 v6, 4, v6")
        e("v_xor_b32 v5, v5, v6")
        e(f"v_add_u32 v5, s{S_B}, v5")
        e("v_and_b32 v5, 7, v5")
        e("v_lshlrev_b32 v5, 4, v5")
        e("v_mul_u32_u24 v6, 1280, v4")
        e(f"v_add_u32 v{V_X[par]}, v6, v5")
        e("v_mul_u32_u24 v6, 384, v4")
        e(f"v_add_u32 v{V_V[par]}, v6, v5")
    if cold:
        e(f"s_lshl_b32 s63, s{S_Q}, 1")
    else:
        e(f"s_lshl_b32 s63, s{S_WL}, 1")
        e(f"s_lshl_b32 s62, s{S_Q}, 1")
        e(f"s_cmp_ge_u32 s63, s62")
        e(f"s_cselect_b32 s62, 2, 0")
        e(f"s_add_u32 s63, s63, s62")
    e(f"s_lshl_b32 s{S_XB0}, s63, 10")
    e(f"s_add_u32 s{S_XB1}, s{S_XB0}, 1024")
    e(f"s_mul_i32 s{S_XO0}, s63, 10240")
    e(f"s_add_u32 s{S_XO1}, s{S_XO0}, 10240")
    e(f"s_mul_i32 s{S_VO0}, s63, 3072")
    e(f"s_add_u32 s{S_VO1}, s{S_VO0}, 3072")
    e("s_waitcnt lgkmcnt(0)")
    L.stamp("kernarg")
    e(f"s_mul_i32 s62, s{S_B}, 81920")
    mk_srd(L, SRD_X, S_KA+0, 62, 81920)
    e(f"s_mul_i32 s62, s{S_H}, 384")
    mk_srd(L, SRD_WQ, S_KA+6, 62, 640*12288 - 31*384)
    def dma(vaddr, srdreg, soff, m0s, m0const, tag):
        if m0s is None: e(f"s_mov_b32 m0, {m0const}")
        else: e(f"s_add_u32 m0, s{m0s}, {m0const}")
        if soff is None: so = "0"; e("s_nop 0")
        elif isinstance(soff, tuple):
            e(f"s_add_u32 s{S_T4}, s{soff[0]}, {soff[1]}"); so = f"s{S_T4}"
        else: so = f"s{soff}"; e("s_nop 0")
        L.vmem(f"buffer_load_dwordx4 v{vaddr}, {srd(srdreg)}, {so} offen lds", tag)
    def load_L(c):
        sb = LSLOT[c] * SLOT
        e(f"s_mov_b32 s{S_T3}, {c*64*12288}")
        for k in range(nWQ):
            dma(V_WQ[k], SRD_WQ, S_T3, None if cold else S_H1024, sb + WQ_IMG + beta_wq(k)*1024, f"L{c}")
        dma(V_X[0], SRD_X, (S_XO0, c*128), S_XB0, sb + X_IMG, f"L{c}")
        dma(V_X[1], SRD_X, (S_XO1, c*128), S_XB1, sb + X_IMG, f"L{c}")
    sched_L = coldL if cold else hotL
    sched_W = coldW if cold else hotW
    for c in range(10):
        if sched_L[c] == -1 and c < 2: load_L(c)
    e(f"s_lshl_b32 s62, s{S_B}, 5")
    e(f"s_add_u32 s63, s62, s{S_H}")
    e(f"s_mul_i32 s63, s63, 24576")
    mk_srd(L, SRD_K, S_KA+2, 63, 24576)
    e(f"s_lshl_b32 s63, s{S_G}, 2")
    e(f"s_add_u32 s63, s63, s62")
    e(f"s_mul_i32 s63, s63, 24576")
    mk_srd(L, SRD_V, S_KA+4, 63, 4*24576)
    e(f"s_mul_i32 s62, s{S_G}, {768*1280}")
    e(f"s_mul_i32 s63, s{S_Q}, 320")
    e(f"s_add_u32 s62, s62, s63")
    mk_srd(L, SRD_WO, S_KA+8, 62, 768*1280 - 960)
    common_scalars(L)
    for c in range(2, 10):
        if sched_L[c] == -1: load_L(c)
    common_scalars2(L)
    if cold:
        e(f"v_lshlrev_b32 v4, 2, v{V_LANE}")
        e("v_mov_b32 v5, 0")
        e("s_mov_b64 s[62:63], exec")
        e("s_mov_b64 exec, 0xff")
        L.vmem(f"buffer_store_dword v5, v4, {srd(SRD_WS)}, s{S_FLGO} offen sc1", "clr", "st")
        e("s_mov_b64 exec, s[62:63]")
    e(f"s_lshl_b32 s62, s{S_B}, 3")
    for k in range(nWO):
        if cold: e(f"v_add_u32 v4, {64*k}, v{V_LANE}")
        else:
            e(f"v_add_u32 v4, {64*(3+3*k)}, v3")
            if k == 5:
                e("v_cmp_le_u32 vcc, 1280, v4")
                e(f"v_subrev_u32 v5, {18*64}, v4")
                e("s_nop 0")
                e("v_cndmask_b32 v4, v4, v5, vcc")
        div_small(5, 4, 20)
        e("v_mul_u32_u24 v6, 20, v5")
        e("v_sub_u32 v6, v4, v6")
        e("v_bfe_u32 v7, v5, 3, 1")
        e("v_lshlrev_b32 v7, 1, v7")
        e("v_xor_b32 v6, v6, v7")
        e("v_add_u32 v5, s62, v5")
        e("v_and_b32 v5, 63, v5")
        e("v_mul_u32_u24 v5, 1280, v5")
        e(f"v_lshl_add_u32 v{V_WO[k]}, v6, 4, v5")
    if not cold:
        e(f"s_cmp_eq_u32 s{S_WL}, 2")
        e(f"s_cselect_b32 s{S_SO2}, {(2*1024 - 18*1024) & 0xffffffff}, s{S_H1024}")
    if cold:
        for k in range(24):
            e(f"v_add_u32 v4, {64*k}, v{V_LANE}")
            div_small(5, 4, 24)
            e("v_mul_u32_u24 v6, 24, v5")
            e("v_sub_u32 v6, v4, v6")
            e("v_bfe_u32 v7, v5, 1, 3")
            e("v_xor_b32 v6, v6, v7")
            e("v_mul_u32_u24 v5, 384, v5")
            e(f"v_lshl_add_u32 v{V_K[k]}, v6, 4, v5")
    def load_W(j):
        hs, di = divmod(j, 3)
        sb = WSLOT[j] * SLOT
        e(f"s_mov_b32 s{S_T3}, {(hs*192 + di*64)*1280}")
        for k in range(nWO):
            if cold: dma(V_WO[k], SRD_WO, S_T3, None, sb + WO_IMG + k*1024, f"W{j}")
            elif k < 5: dma(V_WO[k], SRD_WO, S_T3, S_H1024, sb + WO_IMG + (3+3*k)*1024, f"W{j}")
            else: dma(V_WO[k], SRD_WO, S_T3, S_SO2, sb + WO_IMG + 18*1024, f"W{j}")
        dma(V_V[0], SRD_V, (S_VO0, hs*24576 + di*128), S_XB0, sb + V_IMG, f"W{j}")
        dma(V_V[1], SRD_V, (S_VO1, hs*24576 + di*128), S_XB1, sb + V_IMG, f"W{j}")
    def load_K(ks):
        for k in ks: dma(V_K[k], SRD_K, None, None, KSLOT*SLOT + k*1024, "K")
    def issue_at(tau):
        for c in range(10):
            if sched_L[c] == tau: load_L(c)
        if cold and tau in coldK: load_K(coldK[tau])
        for j in range(12):
            if sched_W[j] == tau: load_W(j)
    hsreg = S_WL
    def p_loads():
        e(f"s_lshl_b32 s62, s{S_B}, 5")
        e(f"s_lshl_b32 s63, s{S_G}, 2")
        e(f"s_add_u32 s62, s62, s63")
        e(f"s_add_u32 s62, s62, s{hsreg}")
        e("s_lshl_b32 s62, s62, 13")
        for f in range(8):
            if f == 4: e("s_add_u32 s62, s62, 4096")
            L.vmem(f"buffer_load_dwordx4 {vr(V_PD + f*4, 4)}, v{V_L16}, {srd(SRD_WS)}, s62 offen offset:{(f%4)*1024} sc1", "pld")
    names = [f"B{i}" for i in range(13)] + [f"V{j}" for j in range(1, 13)]
    for tau in range(25):
        if tau <= 9: L.wait_vm(f"L{tau}")
        if tau == 11: L.wait_vm("K")
        if 12 <= tau <= 23: L.wait_vm(f"W{tau-12}")
        if tau == 24:
            L.wait_vm("pld")
            e(f"s_lshl_b32 s62, s{hsreg}, 13")
            e(f"s_add_u32 s62, s62, {PIMG}")
            e(f"v_add_u32 v{T[2]}, s62, v{V_L16}")
            for f in range(8):
                L.ds(f"ds_write_b128 v{T[2]}, {vr(V_PD + f*4, 4)} offset:{f*1024}", "pw")
            L.wait_lg_all()
        L.barrier(names[tau])
        issue_at(tau)
        if tau == 2 and cold:
            e(f"s_lshl_b32 s62, s{S_B}, 5")
            e(f"v_mov_b32 v4, s62")
            e("v_mov_b32 v5, 1")
            e("s_mov_b64 s[62:63], exec")
            e("s_mov_b64 exec, 1")
            L.wait_vm("L5") if False else None
            L.e("s_waitcnt vmcnt(%d)" % sum(1 for (t,k) in L.vm[[i for i,(t,k) in enumerate(L.vm) if t=="clr"][0]+1:] if k=="ld"))
            L.vmem(f"buffer_atomic_add v5, v4, {srd(SRD_DBG)}, 0 offen sc1", "arr", "st")
            e("s_mov_b64 exec, s[62:63]")
        if tau == 15:
            e(f"s_lshl_b32 s62, s{S_B}, 5")
            e(f"v_mov_b32 v{T[2]}, s62")
            L.vmem(f"buffer_load_dword v{T[1]}, v{T[2]}, {srd(SRD_DBG)}, 0 offen sc1", "cnt")
        if tau == 17:
            L.wait_vm("cnt")
            l0 = L.newlabel(); l1 = L.newlabel()
            e(f"s_mov_b32 s{S_CNT}, 0")
            L.label(l0)
            e(f"v_readfirstlane_b32 s62, v{T[1]}")
            e("s_cmp_ge_u32 s62, 32")
            e(f"s_cbranch_scc1 {l1}")
            e(f"s_add_u32 s{S_CNT}, s{S_CNT}, 1")
            e(f"s_cmp_gt_u32 s{S_CNT}, 200000")
            e(f"s_cbranch_scc1 {l1}")
            e("s_sleep 2")
            e(f"buffer_load_dword v{T[1]}, v{T[2]}, {srd(SRD_DBG)}, 0 offen sc1")
            e("s_waitcnt vmcnt(0)")
            e(f"s_branch {l0}")
            L.label(l1)
            e(f"s_lshl_b32 s62, s{hsreg}, 7")
            e(f"s_add_u32 s{S_T2}, s62, s{S_FLGP}")
            e(f"v_lshlrev_b32 v{T[4]}, 2, v{V_LANE}")
            L.vmem(f"buffer_load_dword v{T[3]}, v{T[4]}, {srd(SRD_WS)}, s{S_T2} offen sc1", "pfl")
        if tau == 20:
            L.wait_vm("pfl")
            def issue(): e(f"buffer_load_dword v{T[3]}, v{T[4]}, {srd(SRD_WS)}, s{S_T2} offen sc1")
            poll_loop(L, issue, T[3], "0xf", first_issued=True)
            p_loads()
    L.stamp("pimg")
    L.barrier("R")
    if not cold:
        lb = L.newlabel()
        e(f"s_cmp_lg_u32 s{S_W}, 4")
        e(f"s_cbranch_scc1 {lb}")
        e(f"s_mov_b32 s{S_XB0}, 4")
        gather(L, S_XB0)
        L.label(lb)
    L.stamp("done")
    prof_end(L, 7 if cold else 4)

H = G(2); H.label("L_loader")
H.e(f"s_cmp_eq_u32 s{S_W}, 7")
H.e("s_cbranch_scc1 L_cold")
if PROF == 2: H.live.append((0, 64)); H.names.append("start"); H.nstamp = 1
gen_loader(H, False)
H.e("s_endpgm")
K = G(3); K.label("L_cold")
if PROF == 3: K.live.append((0, 64)); K.names.append("start"); K.nstamp = 1
gen_loader(K, True)
K.label("L_end")
K.e("s_endpgm")
assert C.nbar == H.nbar == K.nbar, (C.nbar, H.nbar, K.nbar)

out += P.o + C.o + H.o + K.o
out += ['.section .rodata,"a"', ".p2align 6", f".amdhsa_kernel {NAME}", "  .amdhsa_next_free_vgpr 256", "  .amdhsa_next_free_sgpr 102",
        "  .amdhsa_accum_offset 120", "  .amdhsa_group_segment_fixed_size 0", "  .amdhsa_kernarg_size 64", "  .amdhsa_user_sgpr_count 2",
        "  .amdhsa_user_sgpr_kernarg_segment_ptr 1", "  .amdhsa_system_sgpr_workgroup_id_x 1", ".end_amdhsa_kernel"]
print("\n".join(out))
if PROF: open("names%d.txt" % PROF, "w").write(",".join({1: C, 2: H, 3: K}[PROF].names))
```
